```python
import torch

def _softmax(x, axis=-1):
    return torch.softmax(x, dim=axis)

def _gelu(x):
    return torch.nn.functional.gelu(x, approximate='tanh')

def _silu(x):
    return torch.nn.functional.silu(x)

def _sigmoid(x):
    return torch.sigmoid(x)

def _layernorm(x, axis=-1, eps=1e-05):
    m = x.mean(dim=axis, keepdim=True)
    v = x.var(dim=axis, keepdim=True, unbiased=False)
    return (x - m) / torch.sqrt(v + eps)

def _scatter_add(tgt, idx, src, axis=0):
    return tgt.clone().index_add_(axis, idx, src)

def _segment_sum(src, seg, n):
    out = torch.zeros((n,) + src.shape[1:], dtype=src.dtype)
    return out.index_add_(0, seg, src)

def _pad(x, pw):
    flat = tuple((v for pair in reversed(pw) for v in pair))
    return torch.nn.functional.pad(x, flat)
kernel_name = 'standalone__dilated_atrous__vision'

def setup_inputs():

    _w = lambda a: (lambda t: t.to(torch.bfloat16) if t.is_floating_point() else t)(torch.as_tensor(a))
    H = W = 224
    C = 96
    k = 3
    return {'x': _w((lambda *s: torch.randn(*s, dtype=torch.bfloat16) * 0.05)(1, H, W, C)), 'w': _w((lambda *s: torch.randn(*s, dtype=torch.bfloat16) * 0.05)(k, k, C, C) * (1.0 / (k * C ** 0.5)))}

def reference(x, w):
    B, H, W, C = x.shape
    k = 3
    rate = 2
    pad = (k - 1) * rate // 2
    xp = _pad(x, ((0, 0), (pad, pad), (pad, pad), (0, 0)))
    out = torch.zeros_like(x)
    for i in range(k):
        for j in range(k):
            tap = xp[:, i * rate:i * rate + H, j * rate:j * rate + W, :].clone()
            out = out + torch.einsum('bhwc,co->bhwo', tap, w[i, j])
    return out
```

```python
import sys
NAME = "standalone__dilated_atrous__vision"
PS = 224
TROW = 20*PS
INB = 18*TROW
WB = INB
WSLOT = 12*1568
LDS = WB + 4*WSLOT
ACC = 24
FB = [108, 148]
out = []
def e(s): out.append("    " + s)
def lab(s): out.append(s + ":")

hdr = open('cdna_kernels/%s.s.ref' % NAME).read().split('\n')
for l in hdr:
    if l.startswith('; @launch'):
        out.append("; @launch grid=(224,1,1) block=(256,1,1) lds=%d" % LDS)
    elif l.startswith(';'):
        out.append(l)
    else:
        break
out.append('.amdgcn_target "amdgcn-amd-amdhsa--gfx950"')
out.append('.text')
out.append('.globl %s_kernel' % NAME)
out.append('.p2align 8')
out.append('.type %s_kernel,@function' % NAME)
lab('%s_kernel' % NAME)
e('s_cmp_ge_u32 s2, 224')
e('s_cbranch_scc1 L_end')
e('s_load_dwordx4 s[4:7], s[0:1], 0')
e('s_load_dwordx2 s[8:9], s[0:1], 16')
e('s_and_b32 s3, s2, 7')
e('s_lshr_b32 s10, s2, 3')
e('s_mul_i32 s3, s3, 28')
e('s_add_u32 s3, s3, s10')
e('s_mul_i32 s10, s3, 4682')
e('s_lshr_b32 s10, s10, 16')
e('s_mul_i32 s11, s10, 14')
e('s_sub_u32 s11, s3, s11')
e('s_mul_i32 s25, s10, 14')
e('s_lshl_b32 s26, s11, 4')
e('v_lshrrev_b32 v1, 6, v0')
e('v_and_b32 v0, 63, v0')
e('v_readfirstlane_b32 s24, v1')
e('v_mul_u32_u24 v2, 4682, v0')
e('v_lshrrev_b32 v2, 16, v2')
e('v_mul_u32_u24 v3, 14, v2')
e('v_sub_u32 v3, v0, v3')
e('v_mul_u32_u24 v4, 192, v2')
e('v_lshl_add_u32 v4, v3, 4, v4')
e('s_cmp_eq_u32 s26, 0')
e('s_cselect_b32 s27, -384, 0')
e('s_cselect_b32 s28, 0, 2')
e('s_sub_u32 s28, s26, s28')
e('s_cselect_b64 s[30:31], -1, 0')
out.pop()
e('s_cmp_eq_u32 s26, 0')
e('s_cselect_b64 s[30:31], -1, 0')
e('s_cmp_eq_u32 s26, 208')
e('s_cselect_b64 s[32:33], -1, 0')
e('v_add_u32 v4, s27, v4')
e('v_mov_b32 v5, 0x40000000')
e('v_cmp_gt_u32 vcc, 2, v2')
e('s_and_b64 s[30:31], s[30:31], vcc')
e('v_cmp_le_u32 vcc, 2, v2')
e('s_and_b64 s[32:33], s[32:33], vcc')
e('v_cndmask_b32 v10, v4, v5, s[30:31]')
e('v_add_u32 v11, 768, v4')
e('v_add_u32 v12, 1536, v4')
e('v_add_u32 v13, 2304, v4')
e('v_add_u32 v14, 3072, v4')
e('v_cndmask_b32 v14, v14, v5, s[32:33]')
e('s_mul_i32 s29, s24, 4608')
e('v_lshlrev_b32 v15, 4, v0')
e('v_add_u32 v15, s29, v15')
e('s_mov_b32 s34, 0x%08x' % ((0xFFF | (0xFFF<<14) | (0xF<<28)) & 0xffffffff))
e('s_mov_b32 s35, 0x%08x' % (((0xFF) | (0xFFF<<10)) & 0xffffffff))
e('s_mov_b32 s36, -1')
e('s_mov_b32 s37, 0xffff')
e('s_lshr_b32 s38, s24, 1')
e('s_and_b32 s39, s24, 1')
e('v_and_b32 v6, 15, v0')
e('v_lshrrev_b32 v7, 4, v0')
e('s_mul_i32 s40, s38, %d' % (7*TROW))
e('v_mul_u32_u24 v16, %d, v6' % PS)
e('v_lshl_add_u32 v16, v7, 4, v16')
e('v_add_u32 v16, s40, v16')
e('v_lshrrev_b32 v8, 2, v6')
e('v_and_b32 v9, 3, v6')
e('v_mul_u32_u24 v17, 1568, v7')
e('v_mul_u32_u24 v8, 192, v8')
e('v_add_u32 v17, v17, v8')
e('v_lshl_add_u32 v17, v9, 3, v17')
e('s_mul_i32 s41, s39, 96')
e('s_add_u32 s41, s41, %d' % WB)
e('v_add_u32 v17, s41, v17')
e('v_add_u32 v18, %d, v17' % (2*WSLOT))
for i in range(84):
    e('v_mov_b32 v%d, 0' % (ACC+i))
e('s_waitcnt lgkmcnt(0)')
e('s_mov_b32 s12, s4'); e('s_and_b32 s13, s5, 0xffff'); e('s_mov_b32 s14, %d' % (224*224*192)); e('s_mov_b32 s15, 0x00020000')
e('s_mov_b32 s16, s6'); e('s_and_b32 s17, s7, 0xffff'); e('s_mov_b32 s18, %d' % (9*96*192)); e('s_mov_b32 s19, 0x00020000')
e('s_mov_b32 s20, s8'); e('s_and_b32 s21, s9, 0xffff'); e('s_mov_b32 s22, %d' % (224*224*192)); e('s_mov_b32 s23, 0x00020000')
e('s_mul_i32 s42, s24, 4704')
e('s_mul_i32 s43, s24, %d' % TROW)

def wdma(tap):
    slot = tap % 4
    L = []
    for u in range(6):
        L.append(['s_mov_b32 s44, %d' % (tap*18432 + u*768),
                  's_add_u32 m0, s42, %d' % (WB + slot*WSLOT + (u>>1)*1568 + (u&1)*768),
                  's_nop 0',
                  'buffer_load_dwordx4 v15, s[16:19], s44 offen lds'])
    return L

e('s_mov_b64 exec, s[36:37]')
for g in wdma(0):
    for i in g: e(i)
e('s_mov_b64 exec, s[34:35]')
for q in range(5):
    if q == 4:
        e('s_cmp_ge_u32 s24, 2')
        e('s_cbranch_scc1 L_in_done')
    e('s_add_u32 s45, s25, s24')
    e('s_add_u32 s45, s45, %d' % (4*q-2))
    e('s_mul_i32 s46, s45, 224')
    e('s_add_u32 s46, s46, s28')
    e('s_mul_i32 s46, s46, 192')
    e('s_cmp_lt_u32 s45, 224')
    e('s_cselect_b32 s46, s46, 0x40000000')
    for i in range(5):
        e('s_add_u32 m0, s43, %d' % (q*4*TROW + i*4*PS))
        e('v_add_u32 v5, s46, v%d' % (10+i))
        e('buffer_load_dwordx4 v5, s[12:15], 0 offen lds')
lab('L_in_done')
e('s_mov_b64 exec, s[36:37]')
for tap in (1,2,3):
    for g in wdma(tap):
        for i in g: e(i)
e('s_mov_b64 exec, -1')
e('s_waitcnt vmcnt(18)')
e('s_barrier')

def frag_reads(step, buf):
    tap, ks = divmod(step, 3)
    ti, tj = divmod(tap, 3)
    L = []
    base = FB[buf]
    for mm in range(7):
        off = ((mm + 2*ti)*20 + 2*tj)*PS + ks*64
        L.append('ds_read_b128 v[%d:%d], v16 offset:%d' % (base+4*mm, base+4*mm+3, off))
    slot = tap % 4
    wreg = 'v17' if slot < 2 else 'v18'
    for nt in range(3):
        off = (slot & 1)*WSLOT + ks*6272 + nt*32
        wb = base + 28 + 4*nt
        L.append('ds_read_b64_tr_b16 v[%d:%d], %s offset:%d' % (wb, wb+1, wreg, off))
        L.append('ds_read_b64_tr_b16 v[%d:%d], %s offset:%d' % (wb+2, wb+3, wreg, off+768))
    return L

for i in frag_reads(0, 0): e(i)
e('s_waitcnt lgkmcnt(0)')
for step in range(27):
    tap, ks = divmod(step, 3)
    buf = step & 1
    base = FB[buf]
    fillers = []
    pre = []
    if ks == 2 and tap < 8:
        n = 12 if tap <= 5 else (6 if tap == 6 else 0)
        pre = ['s_waitcnt vmcnt(%d)' % n, 's_barrier']
    for i in pre: e(i)
    if step < 26:
        fillers += [[i] for i in frag_reads(step+1, buf^1)]
    if ks == 2 and tap + 4 <= 8:
        d = wdma(tap+4)
        d[0] = ['s_mov_b64 exec, s[36:37]'] + d[0]
        d[-1] = d[-1] + ['s_mov_b64 exec, -1']
        fillers += d
    k = 0
    for mm in range(7):
        for nt in range(3):
            a = ACC + 4*(mm*3+nt)
            e('v_mfma_f32_16x16x32_bf16 v[%d:%d], v[%d:%d], v[%d:%d], v[%d:%d]' %
              (a, a+3, base+28+4*nt, base+28+4*nt+3, base+4*mm, base+4*mm+3, a, a+3))
            if k < len(fillers):
                for i in fillers[k]: e(i)
                k += 1
    while k < len(fillers):
        for i in fillers[k]: e(i)
        k += 1
    if step < 26:
        e('s_waitcnt lgkmcnt(0)')
e('v_mul_u32_u24 v19, 192, v6')
e('s_mul_i32 s41, s39, 96')
e('v_add_u32 v19, s41, v19')
e('v_lshrrev_b32 v8, 1, v7')
e('v_and_b32 v9, 1, v7')
e('v_lshl_add_u32 v20, v8, 4, v19')
e('v_lshl_add_u32 v21, v9, 5, v20')
e('v_mul_u32_u24 v9, 43008, v9')
e('v_add3_u32 v22, v20, v9, 64')
e('v_lshl_add_u32 v23, v7, 3, v19')
e('v_add_u32 v23, 64, v23')
e('s_mul_i32 s47, s38, 7')
e('s_add_u32 s47, s47, s25')
e('s_mul_i32 s47, s47, 224')
e('s_add_u32 s47, s47, s26')
e('s_mul_i32 s47, s47, 192')
e('s_nop 7')
e('s_nop 7')
T = 108
def pack(unit, dst):
    a = ACC + 4*unit
    e('v_cvt_pk_bf16_f32 v%d, v%d, v%d' % (dst, a, a+1))
    e('v_cvt_pk_bf16_f32 v%d, v%d, v%d' % (dst+1, a+2, a+3))
t = T
for mm in range(7):
    pack(mm*3+0, t); pack(mm*3+1, t+2)
    e('s_nop 1')
    e('v_permlane16_swap_b32 v%d, v%d' % (t, t+2))
    e('v_permlane16_swap_b32 v%d, v%d' % (t+1, t+3))
    e('s_add_u32 s48, s47, %d' % (mm*43008))
    e('buffer_store_dwordx4 v[%d:%d], v21, s[20:23], s48 offen' % (t, t+3))
    t += 4
for mm in range(0, 6, 2):
    pack(mm*3+2, t); pack((mm+1)*3+2, t+2)
    e('s_nop 1')
    e('v_permlane16_swap_b32 v%d, v%d' % (t, t+2))
    e('v_permlane16_swap_b32 v%d, v%d' % (t+1, t+3))
    e('s_add_u32 s48, s47, %d' % (mm*43008))
    e('buffer_store_dwordx4 v[%d:%d], v22, s[20:23], s48 offen' % (t, t+3))
    t += 4
pack(6*3+2, t)
e('s_add_u32 s48, s47, %d' % (6*43008))
e('buffer_store_dwordx2 v[%d:%d], v23, s[20:23], s48 offen' % (t, t+1))
lab('L_end')
e('s_endpgm')
out.append('.section .rodata,"a"')
out.append('.p2align 6')
out.append('.amdhsa_kernel %s_kernel' % NAME)
out.append('  .amdhsa_next_free_vgpr 192')
out.append('  .amdhsa_next_free_sgpr 64')
out.append('  .amdhsa_accum_offset 192')
out.append('  .amdhsa_group_segment_fixed_size 0')
out.append('  .amdhsa_kernarg_size 40')
out.append('  .amdhsa_user_sgpr_count 2')
out.append('  .amdhsa_user_sgpr_kernarg_segment_ptr 1')
out.append('  .amdhsa_system_sgpr_workgroup_id_x 1')
out.append('.end_amdhsa_kernel')
open(sys.argv[1] if len(sys.argv) > 1 else 'cdna_kernels/%s.s' % NAME, 'w').write('\n'.join(out) + '\n')
```

```python
import sys, os
DBG = int(os.environ.get('DBG','0'))
NAME = "standalone__dilated_atrous__vision"
PS = 224
TROW = 20*PS
INB = 18*TROW
WB = INB
WSLOT = 12*1568
LDS = WB + 4*WSLOT
ACC = 24
FB = [108, 148]
out = []
def e(s): out.append("    " + s)
def lab(s): out.append(s + ":")

hdr = open('cdna_kernels/%s.s.ref' % NAME).read().split('\n')
for l in hdr:
    if l.startswith('; @launch'):
        out.append("; @launch grid=(224,1,1) block=(256,1,1) lds=%d" % LDS)
    elif l.startswith(';'):
        out.append(l)
    else:
        break
out.append('.amdgcn_target "amdgcn-amd-amdhsa--gfx950"')
out.append('.text')
out.append('.globl %s_kernel' % NAME)
out.append('.p2align 8')
out.append('.type %s_kernel,@function' % NAME)
lab('%s_kernel' % NAME)
e('s_cmp_ge_u32 s2, 224')
e('s_cbranch_scc1 L_end')
e('s_load_dwordx4 s[4:7], s[0:1], 0')
if DBG:
    e('s_memtime s[52:53]')
    e('s_load_dwordx2 s[50:51], s[0:1], 24')
e('s_load_dwordx2 s[8:9], s[0:1], 16')
e('s_and_b32 s3, s2, 7')
e('s_lshr_b32 s10, s2, 3')
e('s_mul_i32 s3, s3, 28')
e('s_add_u32 s3, s3, s10')
e('s_mul_i32 s10, s3, 4682')
e('s_lshr_b32 s10, s10, 16')
e('s_mul_i32 s11, s10, 14')
e('s_sub_u32 s11, s3, s11')
e('s_mul_i32 s25, s10, 14')
e('s_lshl_b32 s26, s11, 4')
e('v_lshrrev_b32 v1, 6, v0')
e('v_and_b32 v0, 63, v0')
e('v_readfirstlane_b32 s24, v1')
e('v_mul_u32_u24 v2, 4682, v0')
e('v_lshrrev_b32 v2, 16, v2')
e('v_mul_u32_u24 v3, 14, v2')
e('v_sub_u32 v3, v0, v3')
e('v_mul_u32_u24 v4, 192, v2')
e('v_lshl_add_u32 v4, v3, 4, v4')
e('s_cmp_eq_u32 s26, 0')
e('s_cselect_b32 s27, -384, 0')
e('s_cselect_b32 s28, 0, 2')
e('s_sub_u32 s28, s26, s28')
e('s_cselect_b64 s[30:31], -1, 0')
out.pop()
e('s_cmp_eq_u32 s26, 0')
e('s_cselect_b64 s[30:31], -1, 0')
e('s_cmp_eq_u32 s26, 208')
e('s_cselect_b64 s[32:33], -1, 0')
e('v_add_u32 v4, s27, v4')
e('v_mov_b32 v5, 0x40000000')
e('v_cmp_gt_u32 vcc, 2, v2')
e('s_and_b64 s[30:31], s[30:31], vcc')
e('v_cmp_le_u32 vcc, 2, v2')
e('s_and_b64 s[32:33], s[32:33], vcc')
e('v_cndmask_b32 v10, v4, v5, s[30:31]')
e('v_add_u32 v11, 768, v4')
e('v_add_u32 v12, 1536, v4')
e('v_add_u32 v13, 2304, v4')
e('v_add_u32 v14, 3072, v4')
e('v_cndmask_b32 v14, v14, v5, s[32:33]')
e('s_mul_i32 s29, s24, 4608')
e('v_lshlrev_b32 v15, 4, v0')
e('v_add_u32 v15, s29, v15')
e('s_mov_b32 s34, 0x%08x' % ((0xFFF | (0xFFF<<14) | (0xF<<28)) & 0xffffffff))
e('s_mov_b32 s35, 0x%08x' % (((0xFF) | (0xFFF<<10)) & 0xffffffff))
e('s_mov_b32 s36, -1')
e('s_mov_b32 s37, 0xffff')
e('s_lshr_b32 s38, s24, 1')
e('s_and_b32 s39, s24, 1')
e('v_and_b32 v6, 15, v0')
e('v_lshrrev_b32 v7, 4, v0')
e('s_mul_i32 s40, s38, %d' % (7*TROW))
e('v_mul_u32_u24 v16, %d, v6' % PS)
e('v_lshl_add_u32 v16, v7, 4, v16')
e('v_add_u32 v16, s40, v16')
e('v_lshrrev_b32 v8, 2, v6')
e('v_and_b32 v9, 3, v6')
e('v_mul_u32_u24 v17, 1568, v7')
e('v_mul_u32_u24 v8, 192, v8')
e('v_add_u32 v17, v17, v8')
e('v_lshl_add_u32 v17, v9, 3, v17')
e('s_mul_i32 s41, s39, 96')
e('s_add_u32 s41, s41, %d' % WB)
e('v_add_u32 v17, s41, v17')
e('v_add_u32 v18, %d, v17' % (2*WSLOT))
for i in range(84):
    e('v_mov_b32 v%d, 0' % (ACC+i))
e('s_waitcnt lgkmcnt(0)')
e('s_mov_b32 s12, s4'); e('s_and_b32 s13, s5, 0xffff'); e('s_mov_b32 s14, %d' % (224*224*192)); e('s_mov_b32 s15, 0x00020000')
e('s_mov_b32 s16, s6'); e('s_and_b32 s17, s7, 0xffff'); e('s_mov_b32 s18, %d' % (9*96*192)); e('s_mov_b32 s19, 0x00020000')
e('s_mov_b32 s20, s8'); e('s_and_b32 s21, s9, 0xffff'); e('s_mov_b32 s22, %d' % (224*224*192)); e('s_mov_b32 s23, 0x00020000')
e('s_mul_i32 s42, s24, 4704')
e('s_mul_i32 s43, s24, %d' % TROW)

def wdma(tap):
    slot = tap % 4
    L = []
    for u in range(6):
        L.append(['s_mov_b32 s44, %d' % (tap*18432 + u*768),
                  's_add_u32 m0, s42, %d' % (WB + slot*WSLOT + (u>>1)*1568 + (u&1)*768),
                  's_nop 0',
                  'buffer_load_dwordx4 v15, s[16:19], s44 offen lds'])
    return L

e('s_mov_b64 exec, s[36:37]')
for g in wdma(0):
    for i in g: e(i)
e('s_mov_b64 exec, s[34:35]')
for q in range(5):
    if q == 4:
        e('s_cmp_ge_u32 s24, 2')
        e('s_cbranch_scc1 L_in_done')
    e('s_add_u32 s45, s25, s24')
    e('s_add_u32 s45, s45, %d' % (4*q-2))
    e('s_mul_i32 s46, s45, 224')
    e('s_add_u32 s46, s46, s28')
    e('s_mul_i32 s46, s46, 192')
    e('s_cmp_lt_u32 s45, 224')
    e('s_cselect_b32 s46, s46, 0x40000000')
    for i in range(5):
        e('s_add_u32 m0, s43, %d' % (q*4*TROW + i*4*PS))
        e('v_add_u32 v5, s46, v%d' % (10+i))
        e('buffer_load_dwordx4 v5, s[12:15], 0 offen lds')
lab('L_in_done')
e('s_mov_b64 exec, s[36:37]')
for tap in (1,2,3):
    for g in wdma(tap):
        for i in g: e(i)
e('s_mov_b64 exec, -1')
e('s_waitcnt vmcnt(18)')
e('s_barrier')
if DBG:
    e('s_memtime s[54:55]')

def frag_reads(step, buf):
    tap, ks = divmod(step, 3)
    ti, tj = divmod(tap, 3)
    L = []
    base = FB[buf]
    for mm in range(7):
        off = ((mm + 2*ti)*20 + 2*tj)*PS + ks*64
        L.append('ds_read_b128 v[%d:%d], v16 offset:%d' % (base+4*mm, base+4*mm+3, off))
    slot = tap % 4
    wreg = 'v17' if slot < 2 else 'v18'
    for nt in range(3):
        off = (slot & 1)*WSLOT + ks*6272 + nt*32
        wb = base + 28 + 4*nt
        L.append('ds_read_b64_tr_b16 v[%d:%d], %s offset:%d' % (wb, wb+1, wreg, off))
        L.append('ds_read_b64_tr_b16 v[%d:%d], %s offset:%d' % (wb+2, wb+3, wreg, off+768))
    return L

for i in frag_reads(0, 0): e(i)
e('s_waitcnt lgkmcnt(0)')
for step in range(27):
    tap, ks = divmod(step, 3)
    buf = step & 1
    base = FB[buf]
    fillers = []
    pre = []
    if ks == 2 and tap < 8:
        n = 12 if tap <= 5 else (6 if tap == 6 else 0)
        pre = ['s_waitcnt vmcnt(%d)' % n, 's_barrier']
    for i in pre: e(i)
    if step < 26:
        fillers += [[i] for i in frag_reads(step+1, buf^1)]
    if ks == 2 and tap + 4 <= 8:
        d = wdma(tap+4)
        d[0] = ['s_mov_b64 exec, s[36:37]'] + d[0]
        d[-1] = d[-1] + ['s_mov_b64 exec, -1']
        fillers += d
    k = 0
    for mm in range(7):
        for nt in range(3):
            a = ACC + 4*(mm*3+nt)
            e('v_mfma_f32_16x16x32_bf16 v[%d:%d], v[%d:%d], v[%d:%d], v[%d:%d]' %
              (a, a+3, base+28+4*nt, base+28+4*nt+3, base+4*mm, base+4*mm+3, a, a+3))
            if k < len(fillers):
                for i in fillers[k]: e(i)
                k += 1
    while k < len(fillers):
        for i in fillers[k]: e(i)
        k += 1
    if step < 26:
        e('s_waitcnt lgkmcnt(0)')
if DBG:
    e('s_memtime s[56:57]')
e('v_mul_u32_u24 v19, 192, v6')
e('s_mul_i32 s41, s39, 96')
e('v_add_u32 v19, s41, v19')
e('v_lshrrev_b32 v8, 1, v7')
e('v_and_b32 v9, 1, v7')
e('v_lshl_add_u32 v20, v8, 4, v19')
e('v_lshl_add_u32 v21, v9, 5, v20')
e('v_mul_u32_u24 v9, 43008, v9')
e('v_add3_u32 v22, v20, v9, 64')
e('v_lshl_add_u32 v23, v7, 3, v19')
e('v_add_u32 v23, 64, v23')
e('s_mul_i32 s47, s38, 7')
e('s_add_u32 s47, s47, s25')
e('s_mul_i32 s47, s47, 224')
e('s_add_u32 s47, s47, s26')
e('s_mul_i32 s47, s47, 192')
e('s_nop 7')
e('s_nop 7')
T = 108
def pack(unit, dst):
    a = ACC + 4*unit
    e('v_cvt_pk_bf16_f32 v%d, v%d, v%d' % (dst, a, a+1))
    e('v_cvt_pk_bf16_f32 v%d, v%d, v%d' % (dst+1, a+2, a+3))
t = T
for mm in range(7):
    pack(mm*3+0, t); pack(mm*3+1, t+2)
    e('s_nop 1')
    e('v_permlane16_swap_b32 v%d, v%d' % (t, t+2))
    e('v_permlane16_swap_b32 v%d, v%d' % (t+1, t+3))
    e('s_add_u32 s48, s47, %d' % (mm*43008))
    e('buffer_store_dwordx4 v[%d:%d], v21, s[20:23], s48 offen' % (t, t+3))
    t += 4
for mm in range(0, 6, 2):
    pack(mm*3+2, t); pack((mm+1)*3+2, t+2)
    e('s_nop 1')
    e('v_permlane16_swap_b32 v%d, v%d' % (t, t+2))
    e('v_permlane16_swap_b32 v%d, v%d' % (t+1, t+3))
    e('s_add_u32 s48, s47, %d' % (mm*43008))
    e('buffer_store_dwordx4 v[%d:%d], v22, s[20:23], s48 offen' % (t, t+3))
    t += 4
pack(6*3+2, t)
e('s_add_u32 s48, s47, %d' % (6*43008))
e('buffer_store_dwordx2 v[%d:%d], v23, s[20:23], s48 offen' % (t, t+1))
if DBG:
    e('s_waitcnt vmcnt(0)')
    e('s_memtime s[58:59]')
    e('s_waitcnt lgkmcnt(0)')
    e('s_cmp_ge_u32 s2, 8')
    e('s_cbranch_scc1 L_end')
    e('s_cmp_lg_u32 s24, 0')
    e('s_cbranch_scc1 L_end')
    e('s_mov_b32 s60, s50'); e('s_and_b32 s61, s51, 0xffff'); e('s_mov_b32 s62, 256'); e('s_mov_b32 s63, 0x00020000')
    e('s_sub_u32 s54, s54, s52'); e('s_sub_u32 s56, s56, s52'); e('s_sub_u32 s58, s58, s52')
    e('v_mov_b32 v0, s54'); e('v_mov_b32 v1, s56'); e('v_mov_b32 v2, s58'); e('v_mov_b32 v3, s52')
    e('s_lshl_b32 s3, s2, 4'); e('v_mov_b32 v5, s3')
    e('buffer_store_dwordx4 v[0:3], v5, s[60:63], 0 offen')
lab('L_end')
e('s_endpgm')
out.append('.section .rodata,"a"')
out.append('.p2align 6')
out.append('.amdhsa_kernel %s_kernel' % NAME)
out.append('  .amdhsa_next_free_vgpr 192')
out.append('  .amdhsa_next_free_sgpr 64')
out.append('  .amdhsa_accum_offset 192')
out.append('  .amdhsa_group_segment_fixed_size 0')
out.append('  .amdhsa_kernarg_size 40')
out.append('  .amdhsa_user_sgpr_count 2')
out.append('  .amdhsa_user_sgpr_kernarg_segment_ptr 1')
out.append('  .amdhsa_system_sgpr_workgroup_id_x 1')
out.append('.end_amdhsa_kernel')
open(sys.argv[1] if len(sys.argv) > 1 else 'cdna_kernels/%s.s' % NAME, 'w').write('\n'.join(out) + '\n')
```

```python
import sys, os
DBG = int(os.environ.get('DBG','0'))
NAME = "standalone__dilated_atrous__vision"
PS = 224
TROW = 20*PS
INB = 18*TROW
WB = INB
WSLOT = 12*1568
LDS = WB + 4*WSLOT
ACC = 24
FB = [108, 148]
out = []
def e(s): out.append("    " + s)
def lab(s): out.append(s + ":")

hdr = open('cdna_kernels/%s.s.ref' % NAME).read().split('\n')
for l in hdr:
    if l.startswith('; @launch'):
        out.append("; @launch grid=(224,1,1) block=(256,1,1) lds=%d" % LDS)
    elif l.startswith(';'):
        out.append(l)
    else:
        break
out.append('.amdgcn_target "amdgcn-amd-amdhsa--gfx950"')
out.append('.text')
out.append('.globl %s_kernel' % NAME)
out.append('.p2align 8')
out.append('.type %s_kernel,@function' % NAME)
lab('%s_kernel' % NAME)
e('s_cmp_ge_u32 s2, 224')
e('s_cbranch_scc1 L_end')
e('s_load_dwordx4 s[4:7], s[0:1], 0')
if DBG:
    e('s_memtime s[52:53]')
    e('s_memrealtime s[64:65]')
    e('s_load_dwordx2 s[50:51], s[0:1], 24')
e('s_load_dwordx2 s[8:9], s[0:1], 16')
e('s_and_b32 s3, s2, 7')
e('s_lshr_b32 s10, s2, 3')
e('s_mul_i32 s3, s3, 28')
e('s_add_u32 s3, s3, s10')
e('s_mul_i32 s10, s3, 4682')
e('s_lshr_b32 s10, s10, 16')
e('s_mul_i32 s11, s10, 14')
e('s_sub_u32 s11, s3, s11')
e('s_mul_i32 s25, s10, 14')
e('s_lshl_b32 s26, s11, 4')
e('v_lshrrev_b32 v1, 6, v0')
e('v_and_b32 v0, 63, v0')
e('v_readfirstlane_b32 s24, v1')
e('v_mul_u32_u24 v2, 4682, v0')
e('v_lshrrev_b32 v2, 16, v2')
e('v_mul_u32_u24 v3, 14, v2')
e('v_sub_u32 v3, v0, v3')
e('v_mul_u32_u24 v4, 192, v2')
e('v_lshl_add_u32 v4, v3, 4, v4')
e('s_cmp_eq_u32 s26, 0')
e('s_cselect_b32 s27, -384, 0')
e('s_cselect_b32 s28, 0, 2')
e('s_sub_u32 s28, s26, s28')
e('s_cselect_b64 s[30:31], -1, 0')
out.pop()
e('s_cmp_eq_u32 s26, 0')
e('s_cselect_b64 s[30:31], -1, 0')
e('s_cmp_eq_u32 s26, 208')
e('s_cselect_b64 s[32:33], -1, 0')
e('v_add_u32 v4, s27, v4')
e('v_mov_b32 v5, 0x40000000')
e('v_cmp_gt_u32 vcc, 2, v2')
e('s_and_b64 s[30:31], s[30:31], vcc')
e('v_cmp_le_u32 vcc, 2, v2')
e('s_and_b64 s[32:33], s[32:33], vcc')
e('v_cndmask_b32 v10, v4, v5, s[30:31]')
e('v_add_u32 v11, 768, v4')
e('v_add_u32 v12, 1536, v4')
e('v_add_u32 v13, 2304, v4')
e('v_add_u32 v14, 3072, v4')
e('v_cndmask_b32 v14, v14, v5, s[32:33]')
e('s_mul_i32 s29, s24, 4608')
e('v_lshlrev_b32 v15, 4, v0')
e('v_add_u32 v15, s29, v15')
e('s_mov_b32 s34, 0x%08x' % ((0xFFF | (0xFFF<<14) | (0xF<<28)) & 0xffffffff))
e('s_mov_b32 s35, 0x%08x' % (((0xFF) | (0xFFF<<10)) & 0xffffffff))
e('s_mov_b32 s36, -1')
e('s_mov_b32 s37, 0xffff')
e('s_lshr_b32 s38, s24, 1')
e('s_and_b32 s39, s24, 1')
e('v_and_b32 v6, 15, v0')
e('v_lshrrev_b32 v7, 4, v0')
e('s_mul_i32 s40, s38, %d' % (7*TROW))
e('v_mul_u32_u24 v16, %d, v6' % PS)
e('v_lshl_add_u32 v16, v7, 4, v16')
e('v_add_u32 v16, s40, v16')
e('v_lshrrev_b32 v8, 2, v6')
e('v_and_b32 v9, 3, v6')
e('v_mul_u32_u24 v17, 1568, v7')
e('v_mul_u32_u24 v8, 192, v8')
e('v_add_u32 v17, v17, v8')
e('v_lshl_add_u32 v17, v9, 3, v17')
e('s_mul_i32 s41, s39, 96')
e('s_add_u32 s41, s41, %d' % WB)
e('v_add_u32 v17, s41, v17')
e('v_add_u32 v18, %d, v17' % (2*WSLOT))
for i in range(84):
    e('v_mov_b32 v%d, 0' % (ACC+i))
e('s_waitcnt lgkmcnt(0)')
e('s_mov_b32 s12, s4'); e('s_and_b32 s13, s5, 0xffff'); e('s_mov_b32 s14, %d' % (224*224*192)); e('s_mov_b32 s15, 0x00020000')
e('s_mov_b32 s16, s6'); e('s_and_b32 s17, s7, 0xffff'); e('s_mov_b32 s18, %d' % (9*96*192)); e('s_mov_b32 s19, 0x00020000')
e('s_mov_b32 s20, s8'); e('s_and_b32 s21, s9, 0xffff'); e('s_mov_b32 s22, %d' % (224*224*192)); e('s_mov_b32 s23, 0x00020000')
e('s_mul_i32 s42, s24, 4704')
e('s_mul_i32 s43, s24, %d' % TROW)

def wdma(tap):
    slot = tap % 4
    L = []
    for u in range(6):
        L.append(['s_mov_b32 s44, %d' % (tap*18432 + u*768),
                  's_add_u32 m0, s42, %d' % (WB + slot*WSLOT + (u>>1)*1568 + (u&1)*768),
                  's_nop 0',
                  'buffer_load_dwordx4 v15, s[16:19], s44 offen lds'])
    return L

e('s_mov_b64 exec, s[36:37]')
for g in wdma(0):
    for i in g: e(i)
e('s_mov_b64 exec, s[34:35]')
for q in range(5):
    if q == 4:
        e('s_cmp_ge_u32 s24, 2')
        e('s_cbranch_scc1 L_in_done')
    e('s_add_u32 s45, s25, s24')
    e('s_add_u32 s45, s45, %d' % (4*q-2))
    e('s_mul_i32 s46, s45, 224')
    e('s_add_u32 s46, s46, s28')
    e('s_mul_i32 s46, s46, 192')
    e('s_cmp_lt_u32 s45, 224')
    e('s_cselect_b32 s46, s46, 0x40000000')
    for i in range(5):
        e('s_add_u32 m0, s43, %d' % (q*4*TROW + i*4*PS))
        e('v_add_u32 v5, s46, v%d' % (10+i))
        e('buffer_load_dwordx4 v5, s[12:15], 0 offen lds')
lab('L_in_done')
e('s_mov_b64 exec, s[36:37]')
for tap in (1,2,3):
    for g in wdma(tap):
        for i in g: e(i)
e('s_mov_b64 exec, -1')
e('s_waitcnt vmcnt(18)')
e('s_barrier')
if DBG:
    e('s_memtime s[54:55]')

def frag_reads(step, buf):
    tap, ks = divmod(step, 3)
    ti, tj = divmod(tap, 3)
    L = []
    base = FB[buf]
    for mm in range(7):
        off = ((mm + 2*ti)*20 + 2*tj)*PS + ks*64
        L.append('ds_read_b128 v[%d:%d], v16 offset:%d' % (base+4*mm, base+4*mm+3, off))
    slot = tap % 4
    wreg = 'v17' if slot < 2 else 'v18'
    for nt in range(3):
        off = (slot & 1)*WSLOT + ks*6272 + nt*32
        wb = base + 28 + 4*nt
        L.append('ds_read_b64_tr_b16 v[%d:%d], %s offset:%d' % (wb, wb+1, wreg, off))
        L.append('ds_read_b64_tr_b16 v[%d:%d], %s offset:%d' % (wb+2, wb+3, wreg, off+768))
    return L

for i in frag_reads(0, 0): e(i)
e('s_waitcnt lgkmcnt(0)')
for step in range(27):
    tap, ks = divmod(step, 3)
    buf = step & 1
    base = FB[buf]
    fillers = []
    pre = []
    if ks == 2 and tap < 8:
        n = 12 if tap <= 5 else (6 if tap == 6 else 0)
        pre = ['s_waitcnt vmcnt(%d)' % n, 's_barrier']
    for i in pre: e(i)
    if step < 26:
        fillers += [[i] for i in frag_reads(step+1, buf^1)]
    if ks == 2 and tap + 4 <= 8:
        d = wdma(tap+4)
        d[0] = ['s_mov_b64 exec, s[36:37]'] + d[0]
        d[-1] = d[-1] + ['s_mov_b64 exec, -1']
        fillers += d
    k = 0
    for mm in range(7):
        for nt in range(3):
            a = ACC + 4*(mm*3+nt)
            e('v_mfma_f32_16x16x32_bf16 v[%d:%d], v[%d:%d], v[%d:%d], v[%d:%d]' %
              (a, a+3, base+28+4*nt, base+28+4*nt+3, base+4*mm, base+4*mm+3, a, a+3))
            if k < len(fillers):
                for i in fillers[k]: e(i)
                k += 1
    while k < len(fillers):
        for i in fillers[k]: e(i)
        k += 1
    if step < 26:
        e('s_waitcnt lgkmcnt(0)')
if DBG:
    e('s_memtime s[56:57]')
e('v_mul_u32_u24 v19, 192, v6')
e('s_mul_i32 s41, s39, 96')
e('v_add_u32 v19, s41, v19')
e('v_lshrrev_b32 v8, 1, v7')
e('v_and_b32 v9, 1, v7')
e('v_lshl_add_u32 v20, v8, 4, v19')
e('v_lshl_add_u32 v21, v9, 5, v20')
e('v_mul_u32_u24 v9, 43008, v9')
e('v_add3_u32 v22, v20, v9, 64')
e('v_lshl_add_u32 v23, v7, 3, v19')
e('v_add_u32 v23, 64, v23')
e('s_mul_i32 s47, s38, 7')
e('s_add_u32 s47, s47, s25')
e('s_mul_i32 s47, s47, 224')
e('s_add_u32 s47, s47, s26')
e('s_mul_i32 s47, s47, 192')
e('s_nop 7')
e('s_nop 7')
T = 108
def pack(unit, dst):
    a = ACC + 4*unit
    e('v_cvt_pk_bf16_f32 v%d, v%d, v%d' % (dst, a, a+1))
    e('v_cvt_pk_bf16_f32 v%d, v%d, v%d' % (dst+1, a+2, a+3))
t = T
for mm in range(7):
    pack(mm*3+0, t); pack(mm*3+1, t+2)
    e('s_nop 1')
    e('v_permlane16_swap_b32 v%d, v%d' % (t, t+2))
    e('v_permlane16_swap_b32 v%d, v%d' % (t+1, t+3))
    e('s_add_u32 s48, s47, %d' % (mm*43008))
    e('buffer_store_dwordx4 v[%d:%d], v21, s[20:23], s48 offen' % (t, t+3))
    t += 4
for mm in range(0, 6, 2):
    pack(mm*3+2, t); pack((mm+1)*3+2, t+2)
    e('s_nop 1')
    e('v_permlane16_swap_b32 v%d, v%d' % (t, t+2))
    e('v_permlane16_swap_b32 v%d, v%d' % (t+1, t+3))
    e('s_add_u32 s48, s47, %d' % (mm*43008))
    e('buffer_store_dwordx4 v[%d:%d], v22, s[20:23], s48 offen' % (t, t+3))
    t += 4
pack(6*3+2, t)
e('s_add_u32 s48, s47, %d' % (6*43008))
e('buffer_store_dwordx2 v[%d:%d], v23, s[20:23], s48 offen' % (t, t+1))
if DBG:
    e('s_waitcnt vmcnt(0)')
    e('s_memtime s[58:59]')
    e('s_memrealtime s[66:67]')
    e('s_waitcnt lgkmcnt(0)')
    e('s_cmp_eq_u32 s2, 223')
    e('s_cselect_b32 s2, 3, s2')
    e('s_cmp_eq_u32 s2, 3')
    e('s_cselect_b32 s3, 1, 0')
    e('s_cmp_ge_u32 s2, 4')
    e('s_cbranch_scc1 L_end')
    e('s_cmp_lg_u32 s24, 0')
    e('s_cbranch_scc1 L_end')
    e('s_mov_b32 s60, s50'); e('s_and_b32 s61, s51, 0xffff'); e('s_mov_b32 s62, 256'); e('s_mov_b32 s63, 0x00020000')
    e('s_sub_u32 s54, s54, s52'); e('s_sub_u32 s56, s56, s52'); e('s_sub_u32 s58, s58, s52')
    e('v_mov_b32 v0, s54'); e('v_mov_b32 v1, s56'); e('v_mov_b32 v2, s58'); e('s_sub_u32 s66, s66, s64'); e('s_lshl_b32 s66, s66, 20'); e('s_and_b32 s64, s64, 0xfffff'); e('s_or_b32 s66, s66, s64'); e('v_mov_b32 v3, s66')
    e('s_lshl_b32 s3, s2, 4'); e('v_mov_b32 v5, s3')
    e('buffer_store_dwordx4 v[0:3], v5, s[60:63], 0 offen')
lab('L_end')
e('s_endpgm')
out.append('.section .rodata,"a"')
out.append('.p2align 6')
out.append('.amdhsa_kernel %s_kernel' % NAME)
out.append('  .amdhsa_next_free_vgpr 192')
out.append('  .amdhsa_next_free_sgpr 80')
out.append('  .amdhsa_accum_offset 192')
out.append('  .amdhsa_group_segment_fixed_size 0')
out.append('  .amdhsa_kernarg_size 40')
out.append('  .amdhsa_user_sgpr_count 2')
out.append('  .amdhsa_user_sgpr_kernarg_segment_ptr 1')
out.append('  .amdhsa_system_sgpr_workgroup_id_x 1')
out.append('.end_amdhsa_kernel')
open(sys.argv[1] if len(sys.argv) > 1 else 'cdna_kernels/%s.s' % NAME, 'w').write('\n'.join(out) + '\n')
```

```python
import sys, os
DBG = int(os.environ.get('DBG','0'))
NAME = "standalone__dilated_atrous__vision"
PS = 224
TROW = 20*PS
INB = 18*TROW
WB = INB
WSLOT = 12*1568
LDS = WB + 4*WSLOT
ACC1 = 24
ACC2 = [72, 84]
PF = 96
PK = 128
WV = 152
NVG = 224
out = []
def e(s): out.append("    " + s)
def lab(s): out.append(s + ":")
def wreg(step, nt):
    idx = step*12 + nt*4
    if idx < 256: return 'a', idx
    return 'v', WV + idx - 256
def rr(t, n, w=4): return '%s[%d:%d]' % (t, n, n+w-1)

hdr = open('cdna_kernels/%s.s.ref' % NAME).read().split('\n')
for l in hdr:
    if l.startswith('; @launch'):
        out.append("; @launch grid=(224,1,1) block=(256,1,1) lds=%d" % LDS)
    elif l.startswith(';'):
        out.append(l)
    else:
        break
out.append('.amdgcn_target "amdgcn-amd-amdhsa--gfx950"')
out.append('.text')
out.append('.globl %s_kernel' % NAME)
out.append('.p2align 8')
out.append('.type %s_kernel,@function' % NAME)
lab('%s_kernel' % NAME)
e('s_cmp_ge_u32 s2, 224')
e('s_cbranch_scc1 L_end')
e('s_load_dwordx4 s[4:7], s[0:1], 0')
e('s_load_dwordx2 s[8:9], s[0:1], 16')
if DBG:
    e('s_memtime s[52:53]')
    e('s_memrealtime s[64:65]')
    e('s_load_dwordx2 s[50:51], s[0:1], 24')
e('s_and_b32 s3, s2, 7')
e('s_lshr_b32 s10, s2, 3')
e('s_mul_i32 s3, s3, 28')
e('s_add_u32 s3, s3, s10')
e('s_mul_i32 s10, s3, 4682')
e('s_lshr_b32 s10, s10, 16')
e('s_mul_i32 s11, s10, 14')
e('s_sub_u32 s11, s3, s11')
e('s_mul_i32 s25, s10, 14')
e('s_lshl_b32 s26, s11, 4')
e('v_lshrrev_b32 v1, 6, v0')
e('v_and_b32 v0, 63, v0')
e('v_readfirstlane_b32 s24, v1')
e('v_mul_u32_u24 v2, 4682, v0')
e('v_lshrrev_b32 v2, 16, v2')
e('v_mul_u32_u24 v3, 14, v2')
e('v_sub_u32 v3, v0, v3')
e('v_mul_u32_u24 v4, 192, v2')
e('v_lshl_add_u32 v4, v3, 4, v4')
e('s_cmp_eq_u32 s26, 0')
e('s_cselect_b32 s27, -384, 0')
e('s_cselect_b32 s28, 0, 2')
e('s_cselect_b64 s[30:31], -1, 0')
e('s_sub_u32 s28, s26, s28')
e('s_cmp_eq_u32 s26, 208')
e('s_cselect_b64 s[32:33], -1, 0')
e('v_add_u32 v4, s27, v4')
e('v_mov_b32 v5, 0x40000000')
e('v_cmp_gt_u32 vcc, 2, v2')
e('s_and_b64 s[30:31], s[30:31], vcc')
e('v_cmp_le_u32 vcc, 2, v2')
e('s_and_b64 s[32:33], s[32:33], vcc')
e('v_cndmask_b32 v10, v4, v5, s[30:31]')
e('v_add_u32 v11, 768, v4')
e('v_add_u32 v12, 1536, v4')
e('v_add_u32 v13, 2304, v4')
e('v_add_u32 v14, 3072, v4')
e('v_cndmask_b32 v14, v14, v5, s[32:33]')
e('s_mul_i32 s29, s24, 4608')
e('v_lshlrev_b32 v15, 4, v0')
e('v_add_u32 v15, s29, v15')
e('s_mov_b32 s34, 0x%08x' % ((0xFFF | (0xFFF<<14) | (0xF<<28)) & 0xffffffff))
e('s_mov_b32 s35, 0x%08x' % (((0xFF) | (0xFFF<<10)) & 0xffffffff))
e('s_mov_b32 s36, -1')
e('s_mov_b32 s37, 0xffff')
e('s_mul_i32 s42, s24, 4704')
e('s_mul_i32 s43, s24, %d' % TROW)
e('s_waitcnt lgkmcnt(0)')
e('s_mov_b32 s16, s6'); e('s_and_b32 s17, s7, 0xffff'); e('s_mov_b32 s18, %d' % (9*96*192)); e('s_mov_b32 s19, 0x00020000')
e('s_mov_b32 s12, s4'); e('s_and_b32 s13, s5, 0xffff'); e('s_mov_b32 s14, %d' % (224*224*192)); e('s_mov_b32 s15, 0x00020000')

def wdma(tap):
    slot = tap % 4
    L = []
    for u in range(6):
        L.append(['s_mov_b32 s44, %d' % (tap*18432 + u*768),
                  's_add_u32 m0, s42, %d' % (WB + slot*WSLOT + (u>>1)*1568 + (u&1)*768),
                  's_nop 0',
                  'buffer_load_dwordx4 v15, s[16:19], s44 offen lds'])
    return L
def indma(q):
    e('s_add_u32 s45, s25, s24')
    e('s_add_u32 s45, s45, %d' % (4*q-2))
    e('s_mul_i32 s46, s45, 224')
    e('s_add_u32 s46, s46, s28')
    e('s_mul_i32 s46, s46, 192')
    e('s_cmp_lt_u32 s45, 224')
    e('s_cselect_b32 s46, s46, 0x40000000')
    for i in range(5):
        e('s_add_u32 m0, s43, %d' % (q*4*TROW + i*4*PS))
        e('v_add_u32 v5, s46, v%d' % (10+i))
        e('buffer_load_dwordx4 v5, s[12:15], 0 offen lds')

e('s_mov_b64 exec, s[36:37]')
for g in wdma(0):
    for i in g: e(i)
e('s_mov_b64 exec, s[34:35]')
indma(0); indma(1)
e('s_mov_b64 exec, s[36:37]')
for tap in (1,2):
    for g in wdma(tap):
        for i in g: e(i)
e('s_mov_b64 exec, s[34:35]')
indma(2)
e('s_cmp_ge_u32 s24, 2')
e('s_cbranch_scc1 L_in_done')
indma(4)
lab('L_in_done')
indma(3)
e('s_mov_b64 exec, s[36:37]')
for g in wdma(3):
    for i in g: e(i)
e('s_mov_b64 exec, -1')
e('s_lshr_b32 s38, s24, 1')
e('s_and_b32 s39, s24, 1')
e('v_and_b32 v6, 15, v0')
e('v_lshrrev_b32 v7, 4, v0')
e('s_mul_i32 s40, s39, %d' % TROW)
e('v_mul_u32_u24 v16, %d, v6' % PS)
e('v_lshl_add_u32 v16, v7, 4, v16')
e('v_add_u32 v16, s40, v16')
e('v_add_u32 v17, %d, v16' % (8*TROW))
e('v_lshrrev_b32 v8, 2, v6')
e('v_and_b32 v9, 3, v6')
e('v_mul_u32_u24 v18, 1568, v7')
e('v_mul_u32_u24 v8, 192, v8')
e('v_add_u32 v18, v18, v8')
e('v_lshl_add_u32 v18, v9, 3, v18')
e('s_mul_i32 s41, s38, 96')
e('s_add_u32 s41, s41, %d' % WB)
e('v_add_u32 v18, s41, v18')
e('v_add_u32 v19, %d, v18' % (2*WSLOT))
e('v_mul_u32_u24 v22, 192, v6')
e('s_mul_i32 s41, s38, 96')
e('v_add_u32 v22, s41, v22')
e('v_lshrrev_b32 v8, 1, v7')
e('v_and_b32 v9, 1, v7')
e('v_lshl_add_u32 v20, v8, 4, v22')
e('v_lshl_add_u32 v20, v9, 5, v20')
e('v_lshl_add_u32 v21, v7, 3, v22')
e('v_add_u32 v21, 64, v21')
e('s_add_u32 s47, s39, s25')
e('s_mul_i32 s47, s47, 224')
e('s_add_u32 s47, s47, s26')
e('s_mul_i32 s47, s47, 192')
e('s_mov_b32 s20, s8'); e('s_and_b32 s21, s9, 0xffff'); e('s_mov_b32 s22, %d' % (224*224*192)); e('s_mov_b32 s23, 0x00020000')
e('s_waitcnt vmcnt(28)')
e('s_barrier')
if DBG:
    e('s_memtime s[54:55]')

def p1_reads(step, buf):
    tap, ks = divmod(step, 3)
    ti, tj = divmod(tap, 3)
    L = []
    slot = tap % 4
    wb = 'v18' if slot < 2 else 'v19'
    for nt in range(3):
        off = (slot & 1)*WSLOT + ks*6272 + nt*32
        t, n = wreg(step, nt)
        L.append('ds_read_b64_tr_b16 %s, %s offset:%d' % (rr(t, n, 2), wb, off))
        L.append('ds_read_b64_tr_b16 %s, %s offset:%d' % (rr(t, n+2, 2), wb, off+768))
    for t in range(4):
        off = ((2*t + 2*ti)*20 + 2*tj)*PS + ks*64
        b = PF + 16*buf + 4*t
        L.append('ds_read_b128 v[%d:%d], v16 offset:%d' % (b, b+3, off))
    return L
def p2_reads(k, tap, buf):
    ti, tj = divmod(tap, 3)
    L = []
    for ks in range(3):
        off = ((2*k + 2*ti)*20 + 2*tj)*PS + ks*64
        b = PF + 16*buf + 4*ks
        L.append('ds_read_b128 v[%d:%d], v17 offset:%d' % (b, b+3, off))
    return L

pkrot = [0]
def pack_tile(acc, rowidx):
    t = PK + 8*(pkrot[0] % 3); pkrot[0] += 1
    L = []
    L.append('v_cvt_pk_bf16_f32 v%d, v%d, v%d' % (t, acc, acc+1))
    L.append('v_cvt_pk_bf16_f32 v%d, v%d, v%d' % (t+1, acc+2, acc+3))
    L.append('v_cvt_pk_bf16_f32 v%d, v%d, v%d' % (t+2, acc+4, acc+5))
    L.append('v_cvt_pk_bf16_f32 v%d, v%d, v%d' % (t+3, acc+6, acc+7))
    L.append('v_cvt_pk_bf16_f32 v%d, v%d, v%d' % (t+4, acc+8, acc+9))
    L.append('v_cvt_pk_bf16_f32 v%d, v%d, v%d' % (t+5, acc+10, acc+11))
    L.append('s_add_u32 s48, s47, %d' % (rowidx*2*43008))
    L.append('v_permlane16_swap_b32 v%d, v%d' % (t, t+2))
    L.append('v_permlane16_swap_b32 v%d, v%d' % (t+1, t+3))
    L.append('buffer_store_dwordx2 v[%d:%d], v21, s[20:23], s48 offen' % (t+4, t+5))
    L.append('buffer_store_dwordx4 v[%d:%d], v20, s[20:23], s48 offen' % (t, t+3))
    return L

def emit_mfmas(mf, fillers):
    k = 0
    n = len(mf)
    for idx, m in enumerate(mf):
        e(m)
        want = ((idx+1)*len(fillers) + n - 1)//n
        while k < want and k < len(fillers):
            for i in fillers[k]: e(i)
            k += 1
    while k < len(fillers):
        for i in fillers[k]: e(i)
        k += 1

for i in p1_reads(0, 0): e(i)
e('s_waitcnt lgkmcnt(0)')
VM = {0:22, 1:22, 2:12, 3:12, 4:12, 5:12, 6:6, 7:0}
for step in range(27):
    tap, ks = divmod(step, 3)
    buf = step & 1
    fillers = []
    if ks == 2 and tap < 8:
        e('s_waitcnt vmcnt(%d)' % VM[tap]); e('s_barrier')
    if step < 26:
        fillers += [[i] for i in p1_reads(step+1, buf^1)]
    else:
        fillers += [[i] for i in p2_reads(0, 0, buf^1)]
    if ks == 2 and tap + 4 <= 8:
        d = wdma(tap+4)
        d[0] = ['s_mov_b64 exec, s[36:37]'] + d[0]
        d[-1] = d[-1] + ['s_mov_b64 exec, -1']
        fillers += d
    mf = []
    for t in range(4):
        for nt in range(3):
            a = ACC1 + 12*t + 4*nt
            wt, wn = wreg(step, nt)
            pb = PF + 16*buf + 4*t
            c = '0' if step == 0 else 'v[%d:%d]' % (a, a+3)
            mf.append('v_mfma_f32_16x16x32_bf16 v[%d:%d], %s, v[%d:%d], %s' % (a, a+3, rr(wt, wn), pb, pb+3, c))
    k = 0
    for idx, m in enumerate(mf):
        e(m)
        for _ in range(2):
            if k < len(fillers):
                for i in fillers[k]: e(i)
                k += 1
    while k < len(fillers):
        for i in fillers[k]: e(i)
        k += 1
    e('s_waitcnt lgkmcnt(0)')
if DBG:
    e('s_memtime s[56:57]')
buf = 27 & 1
pending = []
for t in range(4):
    pending += [[i] for i in pack_tile(ACC1 + 12*t, t)]
for k in range(3):
    acc = ACC2[k & 1]
    for tap in range(9):
        fillers = []
        if tap < 8:
            fillers += [[i] for i in p2_reads(k, tap+1, buf^1)]
        elif k < 2:
            fillers += [[i] for i in p2_reads(k+1, 0, buf^1)]
        mf = []
        for ks in range(3):
            step = tap*3 + ks
            for nt in range(3):
                a = acc + 4*nt
                wt, wn = wreg(step, nt)
                pb = PF + 16*buf + 4*ks
                c = '0' if step == 0 else 'v[%d:%d]' % (a, a+3)
                mf.append('v_mfma_f32_16x16x32_bf16 v[%d:%d], %s, v[%d:%d], %s' % (a, a+3, rr(wt, wn), pb, pb+3, c))
        if tap >= 1:
            take = pending[:7]; pending = pending[7:]
            fillers += take
        emit_mfmas(mf, fillers)
        e('s_waitcnt lgkmcnt(0)')
        buf ^= 1
    pending += [[i] for i in pack_tile(acc, 4 + k)]
if DBG:
    e('s_memtime s[68:69]')
e('s_nop 7')
e('s_nop 1')
for g in pending:
    for i in g:
        if i.startswith('v_permlane') and not out[-1].strip().startswith('v_permlane') and not out[-1].strip().startswith('s_add'):
            e('s_nop 1')
        e(i)
if DBG:
    e('s_waitcnt vmcnt(0)')
    e('s_memtime s[58:59]')
    e('s_memrealtime s[66:67]')
    e('s_waitcnt lgkmcnt(0)')
    e('s_cmp_eq_u32 s2, 223')
    e('s_cselect_b32 s2, 3, s2')
    e('s_cmp_ge_u32 s2, 4')
    e('s_cbranch_scc1 L_end')
    e('s_cmp_lg_u32 s24, 0')
    e('s_cbranch_scc1 L_end')
    e('s_mov_b32 s60, s50'); e('s_and_b32 s61, s51, 0xffff'); e('s_mov_b32 s62, 256'); e('s_mov_b32 s63, 0x00020000')
    e('s_sub_u32 s54, s54, s52'); e('s_sub_u32 s56, s56, s52'); e('s_sub_u32 s58, s58, s52'); e('s_sub_u32 s68, s68, s52')
    e('s_sub_u32 s66, s66, s64')
    e('s_lshl_b32 s54, s54, 16'); e('s_or_b32 s54, s54, s66')
    e('v_mov_b32 v0, s54'); e('v_mov_b32 v1, s56'); e('v_mov_b32 v2, s68'); e('v_mov_b32 v3, s58')
    e('s_lshl_b32 s3, s2, 4'); e('v_mov_b32 v5, s3')
    e('buffer_store_dwordx4 v[0:3], v5, s[60:63], 0 offen')
lab('L_end')
e('s_endpgm')
out.append('.section .rodata,"a"')
out.append('.p2align 6')
out.append('.amdhsa_kernel %s_kernel' % NAME)
out.append('  .amdhsa_next_free_vgpr %d' % (NVG+256))
out.append('  .amdhsa_next_free_sgpr 80')
out.append('  .amdhsa_accum_offset %d' % NVG)
out.append('  .amdhsa_group_segment_fixed_size 0')
out.append('  .amdhsa_kernarg_size 40')
out.append('  .amdhsa_user_sgpr_count 2')
out.append('  .amdhsa_user_sgpr_kernarg_segment_ptr 1')
out.append('  .amdhsa_system_sgpr_workgroup_id_x 1')
out.append('.end_amdhsa_kernel')
open(sys.argv[1] if len(sys.argv) > 1 else 'cdna_kernels/%s.s' % NAME, 'w').write('\n'.join(out) + '\n')
```

```python
import sys, os
DBG = int(os.environ.get('DBG','0'))
NAME = "standalone__dilated_atrous__vision"
PS = 224
TROW = 20*PS
INB = 18*TROW
WB = INB
WSLOT = 12*1568
LDS = WB + 4*WSLOT
ACC1 = 24
ACC2 = [72, 84]
PF = 96
PK = 128
WV = 152
NVG = 224
out = []
def e(s): out.append("    " + s)
def lab(s): out.append(s + ":")
def wreg(step, nt):
    idx = step*12 + nt*4
    if idx < 256: return 'a', idx
    return 'v', WV + idx - 256
def rr(t, n, w=4): return '%s[%d:%d]' % (t, n, n+w-1)

hdr = open('cdna_kernels/%s.s.ref' % NAME).read().split('\n')
for l in hdr:
    if l.startswith('; @launch'):
        out.append("; @launch grid=(224,1,1) block=(256,1,1) lds=%d" % LDS)
    elif l.startswith(';'):
        out.append(l)
    else:
        break
out.append('.amdgcn_target "amdgcn-amd-amdhsa--gfx950"')
out.append('.text')
out.append('.globl %s_kernel' % NAME)
out.append('.p2align 8')
out.append('.type %s_kernel,@function' % NAME)
lab('%s_kernel' % NAME)
e('s_cmp_ge_u32 s2, 224')
e('s_cbranch_scc1 L_end')
e('s_load_dwordx4 s[4:7], s[0:1], 0')
e('s_load_dwordx2 s[8:9], s[0:1], 16')
if DBG:
    e('s_memtime s[52:53]')
    e('s_memrealtime s[64:65]')
    e('s_load_dwordx2 s[50:51], s[0:1], 24')
e('s_and_b32 s3, s2, 7')
e('s_lshr_b32 s10, s2, 3')
e('s_mul_i32 s3, s3, 28')
e('s_add_u32 s3, s3, s10')
e('s_mul_i32 s10, s3, 4682')
e('s_lshr_b32 s10, s10, 16')
e('s_mul_i32 s11, s10, 14')
e('s_sub_u32 s11, s3, s11')
e('s_mul_i32 s25, s10, 14')
e('s_lshl_b32 s26, s11, 4')
e('v_lshrrev_b32 v1, 6, v0')
e('v_and_b32 v0, 63, v0')
e('v_readfirstlane_b32 s24, v1')
e('v_mul_u32_u24 v2, 4682, v0')
e('v_lshrrev_b32 v2, 16, v2')
e('v_mul_u32_u24 v3, 14, v2')
e('v_sub_u32 v3, v0, v3')
e('v_mul_u32_u24 v4, 192, v2')
e('v_lshl_add_u32 v4, v3, 4, v4')
e('s_cmp_eq_u32 s26, 0')
e('s_cselect_b32 s27, -384, 0')
e('s_cselect_b32 s28, 0, 2')
e('s_cselect_b64 s[30:31], -1, 0')
e('s_sub_u32 s28, s26, s28')
e('s_cmp_eq_u32 s26, 208')
e('s_cselect_b64 s[32:33], -1, 0')
e('v_add_u32 v4, s27, v4')
e('v_mov_b32 v5, 0x40000000')
e('v_cmp_gt_u32 vcc, 2, v2')
e('s_and_b64 s[30:31], s[30:31], vcc')
e('v_cmp_le_u32 vcc, 2, v2')
e('s_and_b64 s[32:33], s[32:33], vcc')
e('v_cndmask_b32 v10, v4, v5, s[30:31]')
e('v_add_u32 v11, 768, v4')
e('v_add_u32 v12, 1536, v4')
e('v_add_u32 v13, 2304, v4')
e('v_add_u32 v14, 3072, v4')
e('v_cndmask_b32 v14, v14, v5, s[32:33]')
e('s_mul_i32 s29, s24, 4608')
e('v_lshlrev_b32 v15, 4, v0')
e('v_add_u32 v15, s29, v15')
e('s_mov_b32 s34, 0x%08x' % ((0xFFF | (0xFFF<<14) | (0xF<<28)) & 0xffffffff))
e('s_mov_b32 s35, 0x%08x' % (((0xFF) | (0xFFF<<10)) & 0xffffffff))
e('s_mov_b32 s36, -1')
e('s_mov_b32 s37, 0xffff')
e('s_mul_i32 s42, s24, 4704')
e('s_mul_i32 s43, s24, %d' % TROW)
e('s_waitcnt lgkmcnt(0)')
if DBG:
    e('s_memtime s[70:71]')
e('s_mov_b32 s16, s6'); e('s_and_b32 s17, s7, 0xffff'); e('s_mov_b32 s18, %d' % (9*96*192)); e('s_mov_b32 s19, 0x00020000')
e('s_mov_b32 s12, s4'); e('s_and_b32 s13, s5, 0xffff'); e('s_mov_b32 s14, %d' % (224*224*192)); e('s_mov_b32 s15, 0x00020000')

def wdma(tap):
    slot = tap % 4
    L = []
    for u in range(6):
        L.append(['s_mov_b32 s44, %d' % (tap*18432 + u*768),
                  's_add_u32 m0, s42, %d' % (WB + slot*WSLOT + (u>>1)*1568 + (u&1)*768),
                  's_nop 0',
                  'buffer_load_dwordx4 v15, s[16:19], s44 offen lds'])
    return L
def indma(q):
    e('s_add_u32 s45, s25, s24')
    e('s_add_u32 s45, s45, %d' % (4*q-2))
    e('s_mul_i32 s46, s45, 224')
    e('s_add_u32 s46, s46, s28')
    e('s_mul_i32 s46, s46, 192')
    e('s_cmp_lt_u32 s45, 224')
    e('s_cselect_b32 s46, s46, 0x40000000')
    for i in range(5):
        e('s_add_u32 m0, s43, %d' % (q*4*TROW + i*4*PS))
        e('v_add_u32 v5, s46, v%d' % (10+i))
        e('buffer_load_dwordx4 v5, s[12:15], 0 offen lds')

e('s_mov_b64 exec, s[36:37]')
for g in wdma(0):
    for i in g: e(i)
e('s_mov_b64 exec, s[34:35]')
indma(0); indma(1)
e('s_mov_b64 exec, s[36:37]')
for tap in (1,2):
    for g in wdma(tap):
        for i in g: e(i)
e('s_mov_b64 exec, s[34:35]')
indma(2)
e('s_cmp_ge_u32 s24, 2')
e('s_cbranch_scc1 L_in_done')
indma(4)
lab('L_in_done')
indma(3)
e('s_mov_b64 exec, s[36:37]')
for g in wdma(3):
    for i in g: e(i)
e('s_mov_b64 exec, -1')
e('s_lshr_b32 s38, s24, 1')
e('s_and_b32 s39, s24, 1')
e('v_and_b32 v6, 15, v0')
e('v_lshrrev_b32 v7, 4, v0')
e('s_mul_i32 s40, s39, %d' % TROW)
e('v_mul_u32_u24 v16, %d, v6' % PS)
e('v_lshl_add_u32 v16, v7, 4, v16')
e('v_add_u32 v16, s40, v16')
e('v_add_u32 v17, %d, v16' % (8*TROW))
e('v_lshrrev_b32 v8, 2, v6')
e('v_and_b32 v9, 3, v6')
e('v_mul_u32_u24 v18, 1568, v7')
e('v_mul_u32_u24 v8, 192, v8')
e('v_add_u32 v18, v18, v8')
e('v_lshl_add_u32 v18, v9, 3, v18')
e('s_mul_i32 s41, s38, 96')
e('s_add_u32 s41, s41, %d' % WB)
e('v_add_u32 v18, s41, v18')
e('v_add_u32 v19, %d, v18' % (2*WSLOT))
e('v_mul_u32_u24 v22, 192, v6')
e('s_mul_i32 s41, s38, 96')
e('v_add_u32 v22, s41, v22')
e('v_lshrrev_b32 v8, 1, v7')
e('v_and_b32 v9, 1, v7')
e('v_lshl_add_u32 v20, v8, 4, v22')
e('v_lshl_add_u32 v20, v9, 5, v20')
e('v_lshl_add_u32 v21, v7, 3, v22')
e('v_add_u32 v21, 64, v21')
e('s_add_u32 s47, s39, s25')
e('s_mul_i32 s47, s47, 224')
e('s_add_u32 s47, s47, s26')
e('s_mul_i32 s47, s47, 192')
e('s_mov_b32 s20, s8'); e('s_and_b32 s21, s9, 0xffff'); e('s_mov_b32 s22, %d' % (224*224*192)); e('s_mov_b32 s23, 0x00020000')
if DBG:
    e('s_waitcnt vmcnt(38)')
    e('s_memtime s[72:73]')
e('s_waitcnt vmcnt(28)')
e('s_barrier')
if DBG:
    e('s_memtime s[54:55]')

def p1_reads(step, buf):
    tap, ks = divmod(step, 3)
    ti, tj = divmod(tap, 3)
    L = []
    slot = tap % 4
    wb = 'v18' if slot < 2 else 'v19'
    for nt in range(3):
        off = (slot & 1)*WSLOT + ks*6272 + nt*32
        t, n = wreg(step, nt)
        L.append('ds_read_b64_tr_b16 %s, %s offset:%d' % (rr(t, n, 2), wb, off))
        L.append('ds_read_b64_tr_b16 %s, %s offset:%d' % (rr(t, n+2, 2), wb, off+768))
    for t in range(4):
        off = ((2*t + 2*ti)*20 + 2*tj)*PS + ks*64
        b = PF + 16*buf + 4*t
        L.append('ds_read_b128 v[%d:%d], v16 offset:%d' % (b, b+3, off))
    return L
def p2_reads(k, tap, buf):
    ti, tj = divmod(tap, 3)
    L = []
    for ks in range(3):
        off = ((2*k + 2*ti)*20 + 2*tj)*PS + ks*64
        b = PF + 16*buf + 4*ks
        L.append('ds_read_b128 v[%d:%d], v17 offset:%d' % (b, b+3, off))
    return L

pkrot = [0]
def pack_tile(acc, rowidx):
    t = PK + 8*(pkrot[0] % 3); pkrot[0] += 1
    L = []
    L.append('v_cvt_pk_bf16_f32 v%d, v%d, v%d' % (t, acc, acc+1))
    L.append('v_cvt_pk_bf16_f32 v%d, v%d, v%d' % (t+1, acc+2, acc+3))
    L.append('v_cvt_pk_bf16_f32 v%d, v%d, v%d' % (t+2, acc+4, acc+5))
    L.append('v_cvt_pk_bf16_f32 v%d, v%d, v%d' % (t+3, acc+6, acc+7))
    L.append('v_cvt_pk_bf16_f32 v%d, v%d, v%d' % (t+4, acc+8, acc+9))
    L.append('v_cvt_pk_bf16_f32 v%d, v%d, v%d' % (t+5, acc+10, acc+11))
    L.append('s_add_u32 s48, s47, %d' % (rowidx*2*43008))
    L.append('v_permlane16_swap_b32 v%d, v%d' % (t, t+2))
    L.append('v_permlane16_swap_b32 v%d, v%d' % (t+1, t+3))
    L.append('buffer_store_dwordx2 v[%d:%d], v21, s[20:23], s48 offen' % (t+4, t+5))
    L.append('buffer_store_dwordx4 v[%d:%d], v20, s[20:23], s48 offen' % (t, t+3))
    return L

def emit_mfmas(mf, fillers):
    k = 0
    n = len(mf)
    for idx, m in enumerate(mf):
        e(m)
        want = ((idx+1)*len(fillers) + n - 1)//n
        while k < want and k < len(fillers):
            for i in fillers[k]: e(i)
            k += 1
    while k < len(fillers):
        for i in fillers[k]: e(i)
        k += 1

for i in p1_reads(0, 0): e(i)
e('s_waitcnt lgkmcnt(0)')
VM = {0:22, 1:22, 2:12, 3:12, 4:12, 5:12, 6:6, 7:0}
for step in range(27):
    tap, ks = divmod(step, 3)
    buf = step & 1
    fillers = []
    if ks == 2 and tap < 8:
        e('s_waitcnt vmcnt(%d)' % VM[tap]); e('s_barrier')
    if step < 26:
        fillers += [[i] for i in p1_reads(step+1, buf^1)]
    else:
        fillers += [[i] for i in p2_reads(0, 0, buf^1)]
    if ks == 2 and tap + 4 <= 8:
        d = wdma(tap+4)
        d[0] = ['s_mov_b64 exec, s[36:37]'] + d[0]
        d[-1] = d[-1] + ['s_mov_b64 exec, -1']
        fillers += d
    mf = []
    for t in range(4):
        for nt in range(3):
            a = ACC1 + 12*t + 4*nt
            wt, wn = wreg(step, nt)
            pb = PF + 16*buf + 4*t
            c = '0' if step == 0 else 'v[%d:%d]' % (a, a+3)
            mf.append('v_mfma_f32_16x16x32_bf16 v[%d:%d], %s, v[%d:%d], %s' % (a, a+3, rr(wt, wn), pb, pb+3, c))
    k = 0
    for idx, m in enumerate(mf):
        e(m)
        for _ in range(2):
            if k < len(fillers):
                for i in fillers[k]: e(i)
                k += 1
    while k < len(fillers):
        for i in fillers[k]: e(i)
        k += 1
    e('s_waitcnt lgkmcnt(0)')
if DBG:
    e('s_memtime s[56:57]')
buf = 27 & 1
pending = []
for t in range(4):
    pending += [[i] for i in pack_tile(ACC1 + 12*t, t)]
for k in range(3):
    acc = ACC2[k & 1]
    for tap in range(9):
        fillers = []
        if tap < 8:
            fillers += [[i] for i in p2_reads(k, tap+1, buf^1)]
        elif k < 2:
            fillers += [[i] for i in p2_reads(k+1, 0, buf^1)]
        mf = []
        for ks in range(3):
            step = tap*3 + ks
            for nt in range(3):
                a = acc + 4*nt
                wt, wn = wreg(step, nt)
                pb = PF + 16*buf + 4*ks
                c = '0' if step == 0 else 'v[%d:%d]' % (a, a+3)
                mf.append('v_mfma_f32_16x16x32_bf16 v[%d:%d], %s, v[%d:%d], %s' % (a, a+3, rr(wt, wn), pb, pb+3, c))
        if tap >= 1:
            take = pending[:7]; pending = pending[7:]
            fillers += take
        emit_mfmas(mf, fillers)
        e('s_waitcnt lgkmcnt(0)')
        buf ^= 1
    pending += [[i] for i in pack_tile(acc, 4 + k)]
if DBG:
    e('s_memtime s[68:69]')
e('s_nop 7')
e('s_nop 1')
for g in pending:
    for i in g:
        if i.startswith('v_permlane') and not out[-1].strip().startswith('v_permlane') and not out[-1].strip().startswith('s_add'):
            e('s_nop 1')
        e(i)
if DBG:
    e('s_waitcnt vmcnt(0)')
    e('s_memtime s[58:59]')
    e('s_memrealtime s[66:67]')
    e('s_waitcnt lgkmcnt(0)')
    e('s_cmp_eq_u32 s2, 223')
    e('s_cselect_b32 s2, 3, s2')
    e('s_cmp_ge_u32 s2, 4')
    e('s_cbranch_scc1 L_end')
    e('s_cmp_lg_u32 s24, 0')
    e('s_cbranch_scc1 L_end')
    e('s_mov_b32 s60, s50'); e('s_and_b32 s61, s51, 0xffff'); e('s_mov_b32 s62, 256'); e('s_mov_b32 s63, 0x00020000')
    e('s_sub_u32 s54, s54, s52'); e('s_sub_u32 s56, s56, s52'); e('s_sub_u32 s58, s58, s52'); e('s_sub_u32 s68, s68, s52'); e('s_sub_u32 s70, s70, s52'); e('s_sub_u32 s72, s72, s52'); e('s_lshl_b32 s70, s70, 16'); e('s_or_b32 s68, s70, s72')
    e('s_sub_u32 s66, s66, s64')
    e('s_lshl_b32 s54, s54, 16'); e('s_or_b32 s54, s54, s66')
    e('v_mov_b32 v0, s54'); e('v_mov_b32 v1, s56'); e('v_mov_b32 v2, s68'); e('v_mov_b32 v3, s58')
    e('s_lshl_b32 s3, s2, 4'); e('v_mov_b32 v5, s3')
    e('buffer_store_dwordx4 v[0:3], v5, s[60:63], 0 offen')
lab('L_end')
e('s_endpgm')
out.append('.section .rodata,"a"')
out.append('.p2align 6')
out.append('.amdhsa_kernel %s_kernel' % NAME)
out.append('  .amdhsa_next_free_vgpr %d' % (NVG+256))
out.append('  .amdhsa_next_free_sgpr 80')
out.append('  .amdhsa_accum_offset %d' % NVG)
out.append('  .amdhsa_group_segment_fixed_size 0')
out.append('  .amdhsa_kernarg_size 40')
out.append('  .amdhsa_user_sgpr_count 2')
out.append('  .amdhsa_user_sgpr_kernarg_segment_ptr 1')
out.append('  .amdhsa_system_sgpr_workgroup_id_x 1')
out.append('.end_amdhsa_kernel')
open(sys.argv[1] if len(sys.argv) > 1 else 'cdna_kernels/%s.s' % NAME, 'w').write('\n'.join(out) + '\n')
```

```python
import sys, os
DBG = int(os.environ.get('DBG','0'))
MP = int(os.environ.get('MP','6'))
NAME = "standalone__dilated_atrous__vision"
PS = 224
TROW = 20*PS
INB = 18*TROW
WB = INB
WSLOT = 12*1568
LDS = WB + 4*WSLOT
ACC1 = 24
ACC2 = [24+12*MP, 24+12*MP+12]
PF = 24+12*MP+12*min(2,7-MP)
PFS = 4*MP
PK = PF + 2*PFS
WV = PK + 24
NVG = (WV + 68 + 3)//4*4
assert NVG <= 256
out = []
def e(s): out.append("    " + s)
def lab(s): out.append(s + ":")
def wreg(step, nt):
    idx = step*12 + nt*4
    if idx < 256: return 'a', idx
    return 'v', WV + idx - 256
def rr(t, n, w=4): return '%s[%d:%d]' % (t, n, n+w-1)

hdr = open('cdna_kernels/%s.s.ref' % NAME).read().split('\n')
for l in hdr:
    if l.startswith('; @launch'):
        out.append("; @launch grid=(224,1,1) block=(256,1,1) lds=%d" % LDS)
    elif l.startswith(';'):
        out.append(l)
    else:
        break
out.append('.amdgcn_target "amdgcn-amd-amdhsa--gfx950"')
out.append('.text')
out.append('.globl %s_kernel' % NAME)
out.append('.p2align 8')
out.append('.type %s_kernel,@function' % NAME)
lab('%s_kernel' % NAME)
e('s_cmp_ge_u32 s2, 224')
e('s_cbranch_scc1 L_end')
e('s_load_dwordx4 s[4:7], s[0:1], 0')
e('s_load_dwordx2 s[8:9], s[0:1], 16')
if DBG:
    e('s_memtime s[52:53]')
    e('s_memrealtime s[64:65]')
    e('s_load_dwordx2 s[50:51], s[0:1], 24')
e('s_and_b32 s3, s2, 7')
e('s_lshr_b32 s10, s2, 3')
e('s_mul_i32 s3, s3, 28')
e('s_add_u32 s3, s3, s10')
e('s_mul_i32 s10, s3, 4682')
e('s_lshr_b32 s10, s10, 16')
e('s_mul_i32 s11, s10, 14')
e('s_sub_u32 s11, s3, s11')
e('s_mul_i32 s25, s10, 14')
e('s_lshl_b32 s26, s11, 4')
e('v_lshrrev_b32 v1, 6, v0')
e('v_and_b32 v0, 63, v0')
e('v_readfirstlane_b32 s24, v1')
e('v_mul_u32_u24 v2, 4682, v0')
e('v_lshrrev_b32 v2, 16, v2')
e('v_mul_u32_u24 v3, 14, v2')
e('v_sub_u32 v3, v0, v3')
e('v_mul_u32_u24 v4, 192, v2')
e('v_lshl_add_u32 v4, v3, 4, v4')
e('s_cmp_eq_u32 s26, 0')
e('s_cselect_b32 s27, -384, 0')
e('s_cselect_b32 s28, 0, 2')
e('s_cselect_b64 s[30:31], -1, 0')
e('s_sub_u32 s28, s26, s28')
e('s_cmp_eq_u32 s26, 208')
e('s_cselect_b64 s[32:33], -1, 0')
e('v_add_u32 v4, s27, v4')
e('v_mov_b32 v5, 0x40000000')
e('v_cmp_gt_u32 vcc, 2, v2')
e('s_and_b64 s[30:31], s[30:31], vcc')
e('v_cmp_le_u32 vcc, 2, v2')
e('s_and_b64 s[32:33], s[32:33], vcc')
e('v_cndmask_b32 v10, v4, v5, s[30:31]')
e('v_add_u32 v11, 768, v4')
e('v_add_u32 v12, 1536, v4')
e('v_add_u32 v13, 2304, v4')
e('v_add_u32 v14, 3072, v4')
e('v_cndmask_b32 v14, v14, v5, s[32:33]')
e('s_mul_i32 s29, s24, 4608')
e('v_lshlrev_b32 v15, 4, v0')
e('v_add_u32 v15, s29, v15')
e('s_mov_b32 s34, 0x%08x' % ((0xFFF | (0xFFF<<14) | (0xF<<28)) & 0xffffffff))
e('s_mov_b32 s35, 0x%08x' % (((0xFF) | (0xFFF<<10)) & 0xffffffff))
e('s_mov_b32 s36, -1')
e('s_mov_b32 s37, 0xffff')
e('s_mul_i32 s42, s24, 4704')
e('s_mul_i32 s43, s24, %d' % TROW)
e('s_waitcnt lgkmcnt(0)')
e('s_mov_b32 s16, s6'); e('s_and_b32 s17, s7, 0xffff'); e('s_mov_b32 s18, %d' % (9*96*192)); e('s_mov_b32 s19, 0x00020000')
e('s_mov_b32 s12, s4'); e('s_and_b32 s13, s5, 0xffff'); e('s_mov_b32 s14, %d' % (224*224*192)); e('s_mov_b32 s15, 0x00020000')

def wdma(tap):
    slot = tap % 4
    L = []
    for u in range(6):
        L.append(['s_mov_b32 s44, %d' % (tap*18432 + u*768),
                  's_add_u32 m0, s42, %d' % (WB + slot*WSLOT + (u>>1)*1568 + (u&1)*768),
                  's_nop 0',
                  'buffer_load_dwordx4 v15, s[16:19], s44 offen lds'])
    return L
def indma(q):
    e('s_add_u32 s45, s25, s24')
    e('s_add_u32 s45, s45, %d' % (4*q-2))
    e('s_mul_i32 s46, s45, 224')
    e('s_add_u32 s46, s46, s28')
    e('s_mul_i32 s46, s46, 192')
    e('s_cmp_lt_u32 s45, 224')
    e('s_cselect_b32 s46, s46, 0x40000000')
    for i in range(5):
        e('s_add_u32 m0, s43, %d' % (q*4*TROW + i*4*PS))
        e('v_add_u32 v5, s46, v%d' % (10+i))
        e('buffer_load_dwordx4 v5, s[12:15], 0 offen lds')

e('s_mov_b64 exec, s[36:37]')
for g in wdma(0):
    for i in g: e(i)
e('s_mov_b64 exec, s[34:35]')
indma(0); indma(1); indma(2)
e('s_mov_b64 exec, s[36:37]')
for tap in (1,2):
    for g in wdma(tap):
        for i in g: e(i)
e('s_mov_b64 exec, s[34:35]')
e('s_cmp_ge_u32 s24, 2')
e('s_cbranch_scc1 L_in_done')
indma(4)
lab('L_in_done')
indma(3)
e('s_mov_b64 exec, s[36:37]')
for g in wdma(3):
    for i in g: e(i)
e('s_mov_b64 exec, -1')
e('s_lshr_b32 s38, s24, 1')
e('s_and_b32 s39, s24, 1')
e('v_and_b32 v6, 15, v0')
e('v_lshrrev_b32 v7, 4, v0')
e('s_mul_i32 s40, s39, %d' % TROW)
e('v_mul_u32_u24 v16, %d, v6' % PS)
e('v_lshl_add_u32 v16, v7, 4, v16')
e('v_add_u32 v16, s40, v16')
e('v_add_u32 v17, %d, v16' % (2*MP*TROW))
e('v_lshrrev_b32 v8, 2, v6')
e('v_and_b32 v9, 3, v6')
e('v_mul_u32_u24 v18, 1568, v7')
e('v_mul_u32_u24 v8, 192, v8')
e('v_add_u32 v18, v18, v8')
e('v_lshl_add_u32 v18, v9, 3, v18')
e('s_mul_i32 s41, s38, 96')
e('s_add_u32 s41, s41, %d' % WB)
e('v_add_u32 v18, s41, v18')
e('v_add_u32 v19, %d, v18' % (2*WSLOT))
e('v_mul_u32_u24 v22, 192, v6')
e('s_mul_i32 s41, s38, 96')
e('v_add_u32 v22, s41, v22')
e('v_lshrrev_b32 v8, 1, v7')
e('v_and_b32 v9, 1, v7')
e('v_lshl_add_u32 v20, v8, 4, v22')
e('v_lshl_add_u32 v20, v9, 5, v20')
e('v_lshl_add_u32 v21, v7, 3, v22')
e('v_add_u32 v21, 64, v21')
e('s_add_u32 s47, s39, s25')
e('s_mul_i32 s47, s47, 224')
e('s_add_u32 s47, s47, s26')
e('s_mul_i32 s47, s47, 192')
e('s_mov_b32 s20, s8'); e('s_and_b32 s21, s9, 0xffff'); e('s_mov_b32 s22, %d' % (224*224*192)); e('s_mov_b32 s23, 0x00020000')
e('s_waitcnt vmcnt(23)')
e('s_barrier')
if DBG:
    e('s_memtime s[54:55]')

def p1_reads(step, buf):
    tap, ks = divmod(step, 3)
    ti, tj = divmod(tap, 3)
    L = []
    slot = tap % 4
    wb = 'v18' if slot < 2 else 'v19'
    for nt in range(3):
        off = (slot & 1)*WSLOT + ks*6272 + nt*32
        t, n = wreg(step, nt)
        L.append('ds_read_b64_tr_b16 %s, %s offset:%d' % (rr(t, n, 2), wb, off))
        L.append('ds_read_b64_tr_b16 %s, %s offset:%d' % (rr(t, n+2, 2), wb, off+768))
    for t in range(MP):
        off = ((2*t + 2*ti)*20 + 2*tj)*PS + ks*64
        b = PF + PFS*buf + 4*t
        L.append('ds_read_b128 v[%d:%d], v16 offset:%d' % (b, b+3, off))
    return L
def p2_reads(k, tap, buf):
    ti, tj = divmod(tap, 3)
    L = []
    for ks in range(3):
        off = ((2*k + 2*ti)*20 + 2*tj)*PS + ks*64
        b = PF + PFS*buf + 4*ks
        L.append('ds_read_b128 v[%d:%d], v17 offset:%d' % (b, b+3, off))
    return L

pkrot = [0]
def pack_tile(acc, rowidx):
    t = PK + 8*(pkrot[0] % 3); pkrot[0] += 1
    L = []
    L.append('v_cvt_pk_bf16_f32 v%d, v%d, v%d' % (t, acc, acc+1))
    L.append('v_cvt_pk_bf16_f32 v%d, v%d, v%d' % (t+1, acc+2, acc+3))
    L.append('v_cvt_pk_bf16_f32 v%d, v%d, v%d' % (t+2, acc+4, acc+5))
    L.append('v_cvt_pk_bf16_f32 v%d, v%d, v%d' % (t+3, acc+6, acc+7))
    L.append('v_cvt_pk_bf16_f32 v%d, v%d, v%d' % (t+4, acc+8, acc+9))
    L.append('v_cvt_pk_bf16_f32 v%d, v%d, v%d' % (t+5, acc+10, acc+11))
    L.append('s_add_u32 s48, s47, %d' % (rowidx*2*43008))
    L.append('v_permlane16_swap_b32 v%d, v%d' % (t, t+2))
    L.append('v_permlane16_swap_b32 v%d, v%d' % (t+1, t+3))
    L.append('buffer_store_dwordx2 v[%d:%d], v21, s[20:23], s48 offen' % (t+4, t+5))
    L.append('buffer_store_dwordx4 v[%d:%d], v20, s[20:23], s48 offen' % (t, t+3))
    return L

def emit_mfmas(mf, fillers):
    k = 0
    n = len(mf)
    for idx, m in enumerate(mf):
        e(m)
        want = ((idx+1)*len(fillers) + n - 1)//n
        while k < want and k < len(fillers):
            for i in fillers[k]: e(i)
            k += 1
    while k < len(fillers):
        for i in fillers[k]: e(i)
        k += 1

for i in p1_reads(0, 0): e(i)
e('s_waitcnt lgkmcnt(0)')
VM = {0:17, 1:17, 2:12, 3:12, 4:12, 5:12, 6:6, 7:0}
for step in range(27):
    tap, ks = divmod(step, 3)
    buf = step & 1
    fillers = []
    if ks == 2 and tap < 8:
        e('s_waitcnt vmcnt(%d)' % VM[tap]); e('s_barrier')
    if step < 26:
        fillers += [[i] for i in p1_reads(step+1, buf^1)]
    else:
        fillers += [[i] for i in p2_reads(0, 0, buf^1)]
    if ks == 2 and tap + 4 <= 8:
        d = wdma(tap+4)
        d[0] = ['s_mov_b64 exec, s[36:37]'] + d[0]
        d[-1] = d[-1] + ['s_mov_b64 exec, -1']
        fillers += d
    mf = []
    for t in range(MP):
        for nt in range(3):
            a = ACC1 + 12*t + 4*nt
            wt, wn = wreg(step, nt)
            pb = PF + PFS*buf + 4*t
            c = '0' if step == 0 else 'v[%d:%d]' % (a, a+3)
            mf.append('v_mfma_f32_16x16x32_bf16 v[%d:%d], %s, v[%d:%d], %s' % (a, a+3, rr(wt, wn), pb, pb+3, c))
    k = 0
    for idx, m in enumerate(mf):
        e(m)
        for _ in range(2):
            if k < len(fillers):
                for i in fillers[k]: e(i)
                k += 1
    while k < len(fillers):
        for i in fillers[k]: e(i)
        k += 1
    e('s_waitcnt lgkmcnt(0)')
if DBG:
    e('s_memtime s[56:57]')
buf = 27 & 1
pending = []
for t in range(MP):
    pending += [[i] for i in pack_tile(ACC1 + 12*t, t)]
for k in range(7-MP):
    acc = ACC2[k & 1]
    for tap in range(9):
        fillers = []
        if tap < 8:
            fillers += [[i] for i in p2_reads(k, tap+1, buf^1)]
        elif k < 7-MP-1:
            fillers += [[i] for i in p2_reads(k+1, 0, buf^1)]
        mf = []
        for ks in range(3):
            step = tap*3 + ks
            for nt in range(3):
                a = acc + 4*nt
                wt, wn = wreg(step, nt)
                pb = PF + PFS*buf + 4*ks
                c = '0' if step == 0 else 'v[%d:%d]' % (a, a+3)
                mf.append('v_mfma_f32_16x16x32_bf16 v[%d:%d], %s, v[%d:%d], %s' % (a, a+3, rr(wt, wn), pb, pb+3, c))
        if tap >= 1:
            take = pending[:9]; pending = pending[9:]
            fillers += take
        emit_mfmas(mf, fillers)
        e('s_waitcnt lgkmcnt(0)')
        buf ^= 1
    pending += [[i] for i in pack_tile(acc, MP + k)]
if DBG:
    e('s_memtime s[68:69]')
e('s_nop 7')
e('s_nop 1')
for g in pending:
    for i in g:
        if i.startswith('v_permlane') and not out[-1].strip().startswith('v_permlane') and not out[-1].strip().startswith('s_add'):
            e('s_nop 1')
        e(i)
if DBG:
    e('s_waitcnt vmcnt(0)')
    e('s_memtime s[58:59]')
    e('s_memrealtime s[66:67]')
    e('s_waitcnt lgkmcnt(0)')
    e('s_cmp_eq_u32 s2, 223')
    e('s_cselect_b32 s2, 3, s2')
    e('s_cmp_ge_u32 s2, 4')
    e('s_cbranch_scc1 L_end')
    e('s_cmp_lg_u32 s24, 0')
    e('s_cbranch_scc1 L_end')
    e('s_mov_b32 s60, s50'); e('s_and_b32 s61, s51, 0xffff'); e('s_mov_b32 s62, 256'); e('s_mov_b32 s63, 0x00020000')
    e('s_sub_u32 s54, s54, s52'); e('s_sub_u32 s56, s56, s52'); e('s_sub_u32 s58, s58, s52'); e('s_sub_u32 s68, s68, s52')
    e('s_sub_u32 s66, s66, s64')
    e('s_lshl_b32 s54, s54, 16'); e('s_or_b32 s54, s54, s66')
    e('v_mov_b32 v0, s54'); e('v_mov_b32 v1, s56'); e('v_mov_b32 v2, s68'); e('v_mov_b32 v3, s58')
    e('s_lshl_b32 s3, s2, 4'); e('v_mov_b32 v5, s3')
    e('buffer_store_dwordx4 v[0:3], v5, s[60:63], 0 offen')
lab('L_end')
e('s_endpgm')
out.append('.section .rodata,"a"')
out.append('.p2align 6')
out.append('.amdhsa_kernel %s_kernel' % NAME)
out.append('  .amdhsa_next_free_vgpr %d' % (NVG+256))
out.append('  .amdhsa_next_free_sgpr 80')
out.append('  .amdhsa_accum_offset %d' % NVG)
out.append('  .amdhsa_group_segment_fixed_size 0')
out.append('  .amdhsa_kernarg_size 40')
out.append('  .amdhsa_user_sgpr_count 2')
out.append('  .amdhsa_user_sgpr_kernarg_segment_ptr 1')
out.append('  .amdhsa_system_sgpr_workgroup_id_x 1')
out.append('.end_amdhsa_kernel')
open(sys.argv[1] if len(sys.argv) > 1 else 'cdna_kernels/%s.s' % NAME, 'w').write('\n'.join(out) + '\n')
```

```python
import sys, os
DBG = int(os.environ.get('DBG','0'))
MP = int(os.environ.get('MP','6'))
NAME = "standalone__dilated_atrous__vision"
PS = 224
TROW = 20*PS
INB = 18*TROW
WB = INB
WSLOT = 12*1568
LDS = WB + 4*WSLOT
ACC1 = 24
ACC2 = [24+12*MP, 24+12*MP+12]
PF = 24+12*MP+12*min(2,7-MP)
PFS = 4*MP
PK = PF + 2*PFS
WV = PK + 24
NVG = (WV + 68 + 3)//4*4
assert NVG <= 256
out = []
def e(s): out.append("    " + s)
def lab(s): out.append(s + ":")
def wreg(step, nt):
    idx = step*12 + nt*4
    if idx < 256: return 'a', idx
    return 'v', WV + idx - 256
def rr(t, n, w=4): return '%s[%d:%d]' % (t, n, n+w-1)

hdr = open('cdna_kernels/%s.s.ref' % NAME).read().split('\n')
for l in hdr:
    if l.startswith('; @launch'):
        out.append("; @launch grid=(224,1,1) block=(256,1,1) lds=%d" % LDS)
    elif l.startswith(';'):
        out.append(l)
    else:
        break
out.append('.amdgcn_target "amdgcn-amd-amdhsa--gfx950"')
out.append('.text')
out.append('.globl %s_kernel' % NAME)
out.append('.p2align 8')
out.append('.type %s_kernel,@function' % NAME)
lab('%s_kernel' % NAME)
e('s_cmp_ge_u32 s2, 224')
e('s_cbranch_scc1 L_end')
e('s_load_dwordx4 s[4:7], s[0:1], 0')
e('s_load_dwordx2 s[8:9], s[0:1], 16')
if DBG:
    e('s_memtime s[52:53]')
    e('s_memrealtime s[64:65]')
    e('s_load_dwordx2 s[50:51], s[0:1], 24')
e('s_and_b32 s3, s2, 7')
e('s_lshr_b32 s10, s2, 3')
e('s_mul_i32 s3, s3, 28')
e('s_add_u32 s3, s3, s10')
e('s_mul_i32 s10, s3, 4682')
e('s_lshr_b32 s10, s10, 16')
e('s_mul_i32 s11, s10, 14')
e('s_sub_u32 s11, s3, s11')
e('s_mul_i32 s25, s10, 14')
e('s_lshl_b32 s26, s11, 4')
e('v_lshrrev_b32 v1, 6, v0')
e('v_and_b32 v0, 63, v0')
e('v_readfirstlane_b32 s24, v1')
e('v_mul_u32_u24 v2, 4682, v0')
e('v_lshrrev_b32 v2, 16, v2')
e('v_mul_u32_u24 v3, 14, v2')
e('v_sub_u32 v3, v0, v3')
e('v_mul_u32_u24 v4, 192, v2')
e('v_lshl_add_u32 v4, v3, 4, v4')
e('s_cmp_eq_u32 s26, 0')
e('s_cselect_b32 s27, -384, 0')
e('s_cselect_b32 s28, 0, 2')
e('s_cselect_b64 s[30:31], -1, 0')
e('s_sub_u32 s28, s26, s28')
e('s_cmp_eq_u32 s26, 208')
e('s_cselect_b64 s[32:33], -1, 0')
e('v_add_u32 v4, s27, v4')
e('v_mov_b32 v5, 0x40000000')
e('v_cmp_gt_u32 vcc, 2, v2')
e('s_and_b64 s[30:31], s[30:31], vcc')
e('v_cmp_le_u32 vcc, 2, v2')
e('s_and_b64 s[32:33], s[32:33], vcc')
e('v_cndmask_b32 v10, v4, v5, s[30:31]')
e('v_add_u32 v11, 768, v4')
e('v_add_u32 v12, 1536, v4')
e('v_add_u32 v13, 2304, v4')
e('v_add_u32 v14, 3072, v4')
e('v_cndmask_b32 v14, v14, v5, s[32:33]')
e('s_mul_i32 s29, s24, 4608')
e('v_lshlrev_b32 v15, 4, v0')
e('v_add_u32 v15, s29, v15')
e('s_mov_b32 s34, 0x%08x' % ((0xFFF | (0xFFF<<14) | (0xF<<28)) & 0xffffffff))
e('s_mov_b32 s35, 0x%08x' % (((0xFF) | (0xFFF<<10)) & 0xffffffff))
e('s_mov_b32 s36, -1')
e('s_mov_b32 s37, 0xffff')
e('s_mul_i32 s42, s24, 4704')
e('s_mul_i32 s43, s24, %d' % TROW)
e('s_waitcnt lgkmcnt(0)')
e('s_mov_b32 s16, s6'); e('s_and_b32 s17, s7, 0xffff'); e('s_mov_b32 s18, %d' % (9*96*192)); e('s_mov_b32 s19, 0x00020000')
e('s_mov_b32 s12, s4'); e('s_and_b32 s13, s5, 0xffff'); e('s_mov_b32 s14, %d' % (224*224*192)); e('s_mov_b32 s15, 0x00020000')

def wdma(tap):
    slot = tap % 4
    L = []
    for u in range(6):
        L.append(['s_mov_b32 s44, %d' % (tap*18432 + u*768),
                  's_add_u32 m0, s42, %d' % (WB + slot*WSLOT + (u>>1)*1568 + (u&1)*768),
                  's_nop 0',
                  'buffer_load_dwordx4 v15, s[16:19], s44 offen lds'])
    return L
def indma(q):
    e('s_add_u32 s45, s25, s24')
    e('s_add_u32 s45, s45, %d' % (4*q-2))
    e('s_mul_i32 s46, s45, 224')
    e('s_add_u32 s46, s46, s28')
    e('s_mul_i32 s46, s46, 192')
    e('s_cmp_lt_u32 s45, 224')
    e('s_cselect_b32 s46, s46, 0x40000000')
    for i in range(5):
        e('s_add_u32 m0, s43, %d' % (q*4*TROW + i*4*PS))
        e('v_add_u32 v5, s46, v%d' % (10+i))
        e('buffer_load_dwordx4 v5, s[12:15], 0 offen lds')

e('s_mov_b64 exec, s[36:37]')
for g in wdma(0):
    for i in g: e(i)
e('s_mov_b64 exec, s[34:35]')
indma(0); indma(1); indma(2)
e('s_mov_b64 exec, s[36:37]')
for tap in (1,2):
    for g in wdma(tap):
        for i in g: e(i)
e('s_mov_b64 exec, s[34:35]')
e('s_cmp_ge_u32 s24, 2')
e('s_cbranch_scc1 L_in_done')
indma(4)
lab('L_in_done')
indma(3)
e('s_mov_b64 exec, s[36:37]')
for g in wdma(3):
    for i in g: e(i)
e('s_mov_b64 exec, -1')
e('s_lshr_b32 s38, s24, 1')
e('s_and_b32 s39, s24, 1')
e('v_and_b32 v6, 15, v0')
e('v_lshrrev_b32 v7, 4, v0')
e('s_mul_i32 s40, s39, %d' % TROW)
e('v_mul_u32_u24 v16, %d, v6' % PS)
e('v_lshl_add_u32 v16, v7, 4, v16')
e('v_add_u32 v16, s40, v16')
e('v_add_u32 v17, %d, v16' % (2*MP*TROW))
e('v_lshrrev_b32 v8, 2, v6')
e('v_and_b32 v9, 3, v6')
e('v_mul_u32_u24 v18, 1568, v7')
e('v_mul_u32_u24 v8, 192, v8')
e('v_add_u32 v18, v18, v8')
e('v_lshl_add_u32 v18, v9, 3, v18')
e('s_mul_i32 s41, s38, 96')
e('s_add_u32 s41, s41, %d' % WB)
e('v_add_u32 v18, s41, v18')
e('v_add_u32 v19, %d, v18' % (2*WSLOT))
e('v_mul_u32_u24 v22, 192, v6')
e('s_mul_i32 s41, s38, 96')
e('v_add_u32 v22, s41, v22')
e('v_lshrrev_b32 v8, 1, v7')
e('v_and_b32 v9, 1, v7')
e('v_lshl_add_u32 v20, v8, 4, v22')
e('v_lshl_add_u32 v20, v9, 5, v20')
e('v_lshl_add_u32 v21, v7, 3, v22')
e('v_add_u32 v21, 64, v21')
e('s_add_u32 s47, s39, s25')
e('s_mul_i32 s47, s47, 224')
e('s_add_u32 s47, s47, s26')
e('s_mul_i32 s47, s47, 192')
e('s_mov_b32 s20, s8'); e('s_and_b32 s21, s9, 0xffff'); e('s_mov_b32 s22, %d' % (224*224*192)); e('s_mov_b32 s23, 0x00020000')
e('s_waitcnt vmcnt(23)')
e('s_barrier')
if DBG:
    e('s_memtime s[54:55]')

def p1_reads(step, buf):
    tap, ks = divmod(step, 3)
    ti, tj = divmod(tap, 3)
    L = []
    slot = tap % 4
    wb = 'v18' if slot < 2 else 'v19'
    for nt in range(3):
        off = (slot & 1)*WSLOT + ks*6272 + nt*32
        t, n = wreg(step, nt)
        L.append('ds_read_b64_tr_b16 %s, %s offset:%d' % (rr(t, n, 2), wb, off))
        L.append('ds_read_b64_tr_b16 %s, %s offset:%d' % (rr(t, n+2, 2), wb, off+768))
    for t in range(MP):
        off = ((2*t + 2*ti)*20 + 2*tj)*PS + ks*64
        b = PF + PFS*buf + 4*t
        L.append('ds_read_b128 v[%d:%d], v16 offset:%d' % (b, b+3, off))
    return L
def p2_reads(k, tap, buf):
    ti, tj = divmod(tap, 3)
    L = []
    for ks in range(3):
        off = ((2*k + 2*ti)*20 + 2*tj)*PS + ks*64
        b = PF + PFS*buf + 4*ks
        L.append('ds_read_b128 v[%d:%d], v17 offset:%d' % (b, b+3, off))
    return L

pkrot = [0]
def pack_tile(acc, rowidx):
    t = PK + 8*(pkrot[0] % 3); pkrot[0] += 1
    L = []
    L.append('v_cvt_pk_bf16_f32 v%d, v%d, v%d' % (t, acc, acc+1))
    L.append('v_cvt_pk_bf16_f32 v%d, v%d, v%d' % (t+1, acc+2, acc+3))
    L.append('v_cvt_pk_bf16_f32 v%d, v%d, v%d' % (t+2, acc+4, acc+5))
    L.append('v_cvt_pk_bf16_f32 v%d, v%d, v%d' % (t+3, acc+6, acc+7))
    L.append('v_cvt_pk_bf16_f32 v%d, v%d, v%d' % (t+4, acc+8, acc+9))
    L.append('v_cvt_pk_bf16_f32 v%d, v%d, v%d' % (t+5, acc+10, acc+11))
    L.append('s_add_u32 s48, s47, %d' % (rowidx*2*43008))
    L.append('v_permlane16_swap_b32 v%d, v%d' % (t, t+2))
    L.append('v_permlane16_swap_b32 v%d, v%d' % (t+1, t+3))
    L.append('buffer_store_dwordx2 v[%d:%d], v21, s[20:23], s48 offen' % (t+4, t+5))
    L.append('buffer_store_dwordx4 v[%d:%d], v20, s[20:23], s48 offen' % (t, t+3))
    return L

def emit_mfmas(mf, fillers):
    k = 0
    n = len(mf)
    for idx, m in enumerate(mf):
        e(m)
        want = ((idx+1)*len(fillers) + n - 1)//n
        while k < want and k < len(fillers):
            for i in fillers[k]: e(i)
            k += 1
    while k < len(fillers):
        for i in fillers[k]: e(i)
        k += 1

for i in p1_reads(0, 0): e(i)
e('s_waitcnt lgkmcnt(0)')
VM = {0:17, 1:17, 2:12, 3:12, 4:12, 5:12, 6:6, 7:0}
for step in range(27):
    tap, ks = divmod(step, 3)
    buf = step & 1
    fillers = []
    if ks == 2 and tap < 8:
        if DBG == 2: e('s_memtime s[%d:%d]' % (70+4*tap, 71+4*tap))
        e('s_waitcnt vmcnt(%d)' % VM[tap]); e('s_barrier')
        if DBG == 2: e('s_memtime s[%d:%d]' % (72+4*tap, 73+4*tap))
    if step < 26:
        fillers += [[i] for i in p1_reads(step+1, buf^1)]
    else:
        fillers += [[i] for i in p2_reads(0, 0, buf^1)]
    if ks == 2 and tap + 4 <= 8:
        d = wdma(tap+4)
        d[0] = ['s_mov_b64 exec, s[36:37]'] + d[0]
        d[-1] = d[-1] + ['s_mov_b64 exec, -1']
        fillers += d
    mf = []
    for t in range(MP):
        for nt in range(3):
            a = ACC1 + 12*t + 4*nt
            wt, wn = wreg(step, nt)
            pb = PF + PFS*buf + 4*t
            c = '0' if step == 0 else 'v[%d:%d]' % (a, a+3)
            mf.append('v_mfma_f32_16x16x32_bf16 v[%d:%d], %s, v[%d:%d], %s' % (a, a+3, rr(wt, wn), pb, pb+3, c))
    k = 0
    for idx, m in enumerate(mf):
        e(m)
        for _ in range(2):
            if k < len(fillers):
                for i in fillers[k]: e(i)
                k += 1
    while k < len(fillers):
        for i in fillers[k]: e(i)
        k += 1
    e('s_waitcnt lgkmcnt(0)')
if DBG:
    e('s_memtime s[56:57]')
buf = 27 & 1
pending = []
for t in range(MP):
    pending += [[i] for i in pack_tile(ACC1 + 12*t, t)]
for k in range(7-MP):
    acc = ACC2[k & 1]
    for tap in range(9):
        fillers = []
        if tap < 8:
            fillers += [[i] for i in p2_reads(k, tap+1, buf^1)]
        elif k < 7-MP-1:
            fillers += [[i] for i in p2_reads(k+1, 0, buf^1)]
        mf = []
        for ks in range(3):
            step = tap*3 + ks
            for nt in range(3):
                a = acc + 4*nt
                wt, wn = wreg(step, nt)
                pb = PF + PFS*buf + 4*ks
                c = '0' if step == 0 else 'v[%d:%d]' % (a, a+3)
                mf.append('v_mfma_f32_16x16x32_bf16 v[%d:%d], %s, v[%d:%d], %s' % (a, a+3, rr(wt, wn), pb, pb+3, c))
        if tap >= 1:
            take = pending[:9]; pending = pending[9:]
            fillers += take
        emit_mfmas(mf, fillers)
        e('s_waitcnt lgkmcnt(0)')
        buf ^= 1
    pending += [[i] for i in pack_tile(acc, MP + k)]
if DBG:
    e('s_memtime s[68:69]')
e('s_nop 7')
e('s_nop 1')
for g in pending:
    for i in g:
        if i.startswith('v_permlane') and not out[-1].strip().startswith('v_permlane') and not out[-1].strip().startswith('s_add'):
            e('s_nop 1')
        e(i)
if DBG:
    e('s_waitcnt vmcnt(0)')
    e('s_memtime s[58:59]')
    e('s_memrealtime s[66:67]')
    e('s_waitcnt lgkmcnt(0)')
    if DBG == 2:
        e('s_cmp_lg_u32 s2, 5')
        e('s_cbranch_scc1 L_end')
        e('s_cmp_lg_u32 s24, 0')
        e('s_cbranch_scc1 L_end')
        e('s_mov_b32 s60, s50'); e('s_and_b32 s61, s51, 0xffff'); e('s_mov_b32 s62, 256'); e('s_mov_b32 s63, 0x00020000')
        e('v_mov_b32 v5, 0')
        for tap in range(8):
            e('s_sub_u32 s3, s%d, s52' % (70+4*tap)); e('v_mov_b32 v0, s3')
            e('s_sub_u32 s3, s%d, s52' % (72+4*tap)); e('v_mov_b32 v1, s3')
            e('buffer_store_dwordx2 v[0:1], v5, s[60:63], 0 offen offset:%d' % (8*tap))
            e('s_nop 1')
    else:
        e('s_cmp_eq_u32 s2, 223')
        e('s_cselect_b32 s2, 3, s2')
        e('s_cmp_ge_u32 s2, 4')
        e('s_cbranch_scc1 L_end')
        e('s_cmp_lg_u32 s24, 0')
        e('s_cbranch_scc1 L_end')
        e('s_mov_b32 s60, s50'); e('s_and_b32 s61, s51, 0xffff'); e('s_mov_b32 s62, 256'); e('s_mov_b32 s63, 0x00020000')
        e('s_sub_u32 s54, s54, s52'); e('s_sub_u32 s56, s56, s52'); e('s_sub_u32 s58, s58, s52'); e('s_sub_u32 s68, s68, s52')
        e('s_sub_u32 s66, s66, s64')
        e('s_lshl_b32 s54, s54, 16'); e('s_or_b32 s54, s54, s66')
        e('v_mov_b32 v0, s54'); e('v_mov_b32 v1, s56'); e('v_mov_b32 v2, s68'); e('v_mov_b32 v3, s58')
        e('s_lshl_b32 s3, s2, 4'); e('v_mov_b32 v5, s3')
        e('buffer_store_dwordx4 v[0:3], v5, s[60:63], 0 offen')
lab('L_end')
e('s_endpgm')
out.append('.section .rodata,"a"')
out.append('.p2align 6')
out.append('.amdhsa_kernel %s_kernel' % NAME)
out.append('  .amdhsa_next_free_vgpr %d' % (NVG+256))
out.append('  .amdhsa_next_free_sgpr 102')
out.append('  .amdhsa_accum_offset %d' % NVG)
out.append('  .amdhsa_group_segment_fixed_size 0')
out.append('  .amdhsa_kernarg_size 40')
out.append('  .amdhsa_user_sgpr_count 2')
out.append('  .amdhsa_user_sgpr_kernarg_segment_ptr 1')
out.append('  .amdhsa_system_sgpr_workgroup_id_x 1')
out.append('.end_amdhsa_kernel')
open(sys.argv[1] if len(sys.argv) > 1 else 'cdna_kernels/%s.s' % NAME, 'w').write('\n'.join(out) + '\n')
```

```python
import sys, os, re
DBG = int(os.environ.get('DBG','0'))
MP = int(os.environ.get('MP','5'))
DMAPOS = os.environ.get('DMAPOS','spread')
NAME = "standalone__dilated_atrous__vision"
PS = 224
TROW = 20*PS
INB = 18*TROW
WB = INB
WSLOT = 12*1568
LDS = WB + 4*WSLOT
NP2 = 7 - MP
ACC1 = 24
ACC2 = [24+12*MP, 24+12*MP+12]
PF = 24+12*MP+12*min(2,NP2)
PFS = 4*MP
PFTOT = max(2*PFS, PFS+24)
P2BUF = [PF+PFS, PF+PFS+12, PF]
PK = PF + PFTOT
WV = PK + 24
NVG = (WV + 68 + 3)//4*4
assert NVG <= 256
out = []
dsq = []
def e(s): out.append("    " + s)
def lab(s): out.append(s + ":")
def wreg(step, nt):
    idx = step*12 + nt*4
    if idx < 256: return 'a', idx
    return 'v', WV + idx - 256
def rr(t, n, w=4): return '%s[%d:%d]' % (t, n, n+w-1)
def regs(t, n, w=4): return set((t, n+i) for i in range(w))
def ds(instr, dst):
    e(instr); dsq.append(dst)
def need(rs):
    last = -1
    for i, d in enumerate(dsq):
        if d & rs: last = i
    if last >= 0:
        n = len(dsq) - 1 - last
        n = min(n, 15)
        e('s_waitcnt lgkmcnt(%d)' % n)
        del dsq[:len(dsq)-n]
def drain():
    if dsq:
        e('s_waitcnt lgkmcnt(0)'); del dsq[:]
def stamp(a):
    e('s_memtime s[%d:%d]' % (a, a+1)); e('s_waitcnt lgkmcnt(0)'); del dsq[:]

hdr = open('cdna_kernels/%s.s.ref' % NAME).read().split('\n')
for l in hdr:
    if l.startswith('; @launch'):
        out.append("; @launch grid=(224,1,1) block=(256,1,1) lds=%d" % LDS)
    elif l.startswith(';'):
        out.append(l)
    else:
        break
out.append('.amdgcn_target "amdgcn-amd-amdhsa--gfx950"')
out.append('.text')
out.append('.globl %s_kernel' % NAME)
out.append('.p2align 8')
out.append('.type %s_kernel,@function' % NAME)
lab('%s_kernel' % NAME)
e('s_cmp_ge_u32 s2, 224')
e('s_cbranch_scc1 L_end')
e('s_load_dwordx4 s[4:7], s[0:1], 0')
e('s_load_dwordx2 s[8:9], s[0:1], 16')
if DBG:
    e('s_memtime s[52:53]')
    e('s_memrealtime s[64:65]')
    e('s_load_dwordx2 s[50:51], s[0:1], 24')
e('s_and_b32 s3, s2, 7')
e('s_lshr_b32 s10, s2, 3')
e('s_mul_i32 s3, s3, 28')
e('s_add_u32 s3, s3, s10')
e('s_mul_i32 s10, s3, 4682')
e('s_lshr_b32 s10, s10, 16')
e('s_mul_i32 s11, s10, 14')
e('s_sub_u32 s11, s3, s11')
e('s_mul_i32 s25, s10, 14')
e('s_lshl_b32 s26, s11, 4')
e('v_lshrrev_b32 v1, 6, v0')
e('v_and_b32 v0, 63, v0')
e('v_readfirstlane_b32 s24, v1')
e('v_mul_u32_u24 v2, 4682, v0')
e('v_lshrrev_b32 v2, 16, v2')
e('v_mul_u32_u24 v3, 14, v2')
e('v_sub_u32 v3, v0, v3')
e('v_mul_u32_u24 v4, 192, v2')
e('v_lshl_add_u32 v4, v3, 4, v4')
e('s_cmp_eq_u32 s26, 0')
e('s_cselect_b32 s27, -384, 0')
e('s_cselect_b32 s28, 0, 2')
e('s_cselect_b64 s[30:31], -1, 0')
e('s_sub_u32 s28, s26, s28')
e('s_cmp_eq_u32 s26, 208')
e('s_cselect_b64 s[32:33], -1, 0')
e('v_add_u32 v4, s27, v4')
e('v_mov_b32 v5, 0x40000000')
e('v_cmp_gt_u32 vcc, 2, v2')
e('s_and_b64 s[30:31], s[30:31], vcc')
e('v_cmp_le_u32 vcc, 2, v2')
e('s_and_b64 s[32:33], s[32:33], vcc')
e('v_cndmask_b32 v10, v4, v5, s[30:31]')
e('v_add_u32 v11, 768, v4')
e('v_add_u32 v12, 1536, v4')
e('v_add_u32 v13, 2304, v4')
e('v_add_u32 v14, 3072, v4')
e('v_cndmask_b32 v14, v14, v5, s[32:33]')
e('s_mul_i32 s29, s24, 4608')
e('v_lshlrev_b32 v15, 4, v0')
e('v_add_u32 v15, s29, v15')
e('s_mov_b32 s34, 0x%08x' % ((0xFFF | (0xFFF<<14) | (0xF<<28)) & 0xffffffff))
e('s_mov_b32 s35, 0x%08x' % (((0xFF) | (0xFFF<<10)) & 0xffffffff))
e('s_mov_b32 s36, -1')
e('s_mov_b32 s37, 0xffff')
e('s_mul_i32 s42, s24, 4704')
e('s_mul_i32 s43, s24, %d' % TROW)
e('s_waitcnt lgkmcnt(0)')
e('s_mov_b32 s16, s6'); e('s_and_b32 s17, s7, 0xffff'); e('s_mov_b32 s18, %d' % (9*96*192)); e('s_mov_b32 s19, 0x00020000')
e('s_mov_b32 s12, s4'); e('s_and_b32 s13, s5, 0xffff'); e('s_mov_b32 s14, %d' % (224*224*192)); e('s_mov_b32 s15, 0x00020000')

def wdma(tap):
    slot = tap % 4
    L = []
    for u in range(6):
        L.append(['s_mov_b32 s44, %d' % (tap*18432 + u*768),
                  's_add_u32 m0, s42, %d' % (WB + slot*WSLOT + (u>>1)*1568 + (u&1)*768),
                  's_nop 0',
                  'buffer_load_dwordx4 v15, s[16:19], s44 offen lds'])
    return L
def indma(q):
    e('s_add_u32 s45, s25, s24')
    e('s_add_u32 s45, s45, %d' % (4*q-2))
    e('s_mul_i32 s46, s45, 224')
    e('s_add_u32 s46, s46, s28')
    e('s_mul_i32 s46, s46, 192')
    e('s_cmp_lt_u32 s45, 224')
    e('s_cselect_b32 s46, s46, 0x40000000')
    for i in range(5):
        e('s_add_u32 m0, s43, %d' % (q*4*TROW + i*4*PS))
        e('v_add_u32 v5, s46, v%d' % (10+i))
        e('buffer_load_dwordx4 v5, s[12:15], 0 offen lds')

e('s_mov_b64 exec, s[36:37]')
for g in wdma(0):
    for i in g: e(i)
e('s_mov_b64 exec, s[34:35]')
indma(0); indma(1); indma(2)
e('s_mov_b64 exec, s[36:37]')
for tap in (1,2):
    for g in wdma(tap):
        for i in g: e(i)
e('s_mov_b64 exec, s[34:35]')
e('s_cmp_ge_u32 s24, 2')
e('s_cbranch_scc1 L_in_done')
indma(4)
lab('L_in_done')
indma(3)
e('s_mov_b64 exec, s[36:37]')
for g in wdma(3):
    for i in g: e(i)
e('s_mov_b64 exec, -1')
e('s_lshr_b32 s38, s24, 1')
e('s_and_b32 s39, s24, 1')
e('v_and_b32 v6, 15, v0')
e('v_lshrrev_b32 v7, 4, v0')
e('s_mul_i32 s40, s39, %d' % TROW)
e('v_mul_u32_u24 v16, %d, v6' % PS)
e('v_lshl_add_u32 v16, v7, 4, v16')
e('v_add_u32 v16, s40, v16')
e('v_add_u32 v17, %d, v16' % (2*MP*TROW))
e('v_lshrrev_b32 v8, 2, v6')
e('v_and_b32 v9, 3, v6')
e('v_mul_u32_u24 v18, 1568, v7')
e('v_mul_u32_u24 v8, 192, v8')
e('v_add_u32 v18, v18, v8')
e('v_lshl_add_u32 v18, v9, 3, v18')
e('s_mul_i32 s41, s38, 96')
e('s_add_u32 s41, s41, %d' % WB)
e('v_add_u32 v18, s41, v18')
e('v_add_u32 v19, %d, v18' % (2*WSLOT))
e('v_mul_u32_u24 v22, 192, v6')
e('s_mul_i32 s41, s38, 96')
e('v_add_u32 v22, s41, v22')
e('v_lshrrev_b32 v8, 1, v7')
e('v_and_b32 v9, 1, v7')
e('v_lshl_add_u32 v20, v8, 4, v22')
e('v_lshl_add_u32 v20, v9, 5, v20')
e('v_lshl_add_u32 v21, v7, 3, v22')
e('v_add_u32 v21, 64, v21')
e('s_add_u32 s47, s39, s25')
e('s_mul_i32 s47, s47, 224')
e('s_add_u32 s47, s47, s26')
e('s_mul_i32 s47, s47, 192')
e('s_mov_b32 s20, s8'); e('s_and_b32 s21, s9, 0xffff'); e('s_mov_b32 s22, %d' % (224*224*192)); e('s_mov_b32 s23, 0x00020000')
e('s_waitcnt vmcnt(23)')
e('s_barrier')
if DBG: stamp(54)

def p1_reads(step, buf):
    tap, ks = divmod(step, 3)
    ti, tj = divmod(tap, 3)
    L = []
    slot = tap % 4
    wb = 'v18' if slot < 2 else 'v19'
    for nt in range(3):
        off = (slot & 1)*WSLOT + ks*6272 + nt*32
        t, n = wreg(step, nt)
        L.append(('ds_read_b64_tr_b16 %s, %s offset:%d' % (rr(t, n, 2), wb, off), regs(t, n, 2)))
        L.append(('ds_read_b64_tr_b16 %s, %s offset:%d' % (rr(t, n+2, 2), wb, off+768), regs(t, n+2, 2)))
    for t in range(MP):
        off = ((2*t + 2*ti)*20 + 2*tj)*PS + ks*64
        b = PF + PFS*buf + 4*t
        L.append(('ds_read_b128 v[%d:%d], v16 offset:%d' % (b, b+3, off), regs('v', b)))
    return L
def p2_reads(k, tap, buf):
    ti, tj = divmod(tap, 3)
    L = []
    for ks in range(3):
        off = ((2*k + 2*ti)*20 + 2*tj)*PS + ks*64
        b = P2BUF[buf] + 4*ks
        L.append(('ds_read_b128 v[%d:%d], v17 offset:%d' % (b, b+3, off), regs('v', b)))
    return L

pkrot = [0]
def pack_tile(acc, rowidx):
    t = PK + 8*(pkrot[0] % 3); pkrot[0] += 1
    L = []
    L.append('v_cvt_pk_bf16_f32 v%d, v%d, v%d' % (t, acc, acc+1))
    L.append('v_cvt_pk_bf16_f32 v%d, v%d, v%d' % (t+1, acc+2, acc+3))
    L.append('v_cvt_pk_bf16_f32 v%d, v%d, v%d' % (t+2, acc+4, acc+5))
    L.append('v_cvt_pk_bf16_f32 v%d, v%d, v%d' % (t+3, acc+6, acc+7))
    L.append('v_cvt_pk_bf16_f32 v%d, v%d, v%d' % (t+4, acc+8, acc+9))
    L.append('v_cvt_pk_bf16_f32 v%d, v%d, v%d' % (t+5, acc+10, acc+11))
    L.append('s_add_u32 s48, s47, %d' % (rowidx*2*43008))
    L.append('v_permlane16_swap_b32 v%d, v%d' % (t, t+2))
    L.append('v_permlane16_swap_b32 v%d, v%d' % (t+1, t+3))
    L.append('buffer_store_dwordx2 v[%d:%d], v21, s[20:23], s48 offen' % (t+4, t+5))
    L.append('buffer_store_dwordx4 v[%d:%d], v20, s[20:23], s48 offen' % (t, t+3))
    return L

def run(mf, fillers, per=2):
    k = 0
    for idx, (m, nd) in enumerate(mf):
        need(nd)
        e(m)
        for _ in range(per):
            if k < len(fillers):
                f = fillers[k]; k += 1
                if f[0] == 'ds': ds(f[1], f[2])
                else:
                    for i in f[1]: e(i)
    while k < len(fillers):
        f = fillers[k]; k += 1
        if f[0] == 'ds': ds(f[1], f[2])
        else:
            for i in f[1]: e(i)

for i, d in p1_reads(0, 0): ds(i, d)
VM = {0:17, 1:17, 2:12, 3:12, 4:12, 5:12, 6:6, 7:0}
for step in range(27):
    tap, ks = divmod(step, 3)
    buf = step & 1
    fillers = []
    if ks == 2 and tap < 8:
        nd = set()
        for nt in range(3):
            t, n = wreg(step, nt); nd |= regs(t, n)
        need(nd)
        if DBG == 2: stamp(70+4*tap)
        e('s_waitcnt vmcnt(%d)' % VM[tap]); e('s_barrier')
        if DBG == 2: stamp(72+4*tap)
    if step < 26:
        fillers += [('ds', i, d) for i, d in p1_reads(step+1, buf^1)]
    if step == 26:
        fillers += [('ds', i, d) for i, d in p2_reads(0, 0, 0)]
        fillers += [('ds', i, d) for i, d in p2_reads(0, 1, 1)]
    if ks == 2 and tap + 4 <= 8:
        d = wdma(tap+4)
        d[0] = ['s_mov_b64 exec, s[36:37]'] + d[0]
        d[-1] = d[-1] + ['s_mov_b64 exec, -1']
        if DMAPOS == 'spread':
            fillers += [('raw', g) for g in d]
        else:
            fillers += [('raw', sum(d, []))]
    mf = []
    for t in range(MP):
        for nt in range(3):
            a = ACC1 + 12*t + 4*nt
            wt, wn = wreg(step, nt)
            pb = PF + PFS*buf + 4*t
            c = '0' if step == 0 else 'v[%d:%d]' % (a, a+3)
            mf.append(('v_mfma_f32_16x16x32_bf16 v[%d:%d], %s, v[%d:%d], %s' % (a, a+3, rr(wt, wn), pb, pb+3, c),
                       regs(wt, wn) | regs('v', pb)))
    if step == 26:
        pass
    run(mf, fillers)
if DBG: stamp(56)
seq = [(k, tap) for k in range(NP2) for tap in range(9)]
pending = []
for t in range(MP):
    pending += [('raw', [i]) for i in pack_tile(ACC1 + 12*t, t)]
for si, (k, tap) in enumerate(seq):
    acc = ACC2[k & 1]
    buf = si % 3
    fillers = []
    if si + 2 < len(seq):
        fillers += [('ds', i, d) for i, d in p2_reads(seq[si+2][0], seq[si+2][1], (si+2) % 3)]
    mf = []
    for ks in range(3):
        step = tap*3 + ks
        for nt in range(3):
            a = acc + 4*nt
            wt, wn = wreg(step, nt)
            pb = P2BUF[buf] + 4*ks
            c = '0' if step == 0 else 'v[%d:%d]' % (a, a+3)
            mf.append(('v_mfma_f32_16x16x32_bf16 v[%d:%d], %s, v[%d:%d], %s' % (a, a+3, rr(wt, wn), pb, pb+3, c), regs('v', pb)))
    if not (tap == 0):
        take = pending[:12]; pending = pending[12:]
        fillers += take
    run(mf, fillers)
    if tap == 8:
        pending += [('raw', [i]) for i in pack_tile(acc, MP + k)]
if DBG: stamp(68)
e('s_nop 7')
e('s_nop 1')
for g in pending:
    for i in g[1]:
        e(i)
if DBG:
    e('s_waitcnt vmcnt(0)')
    e('s_memtime s[58:59]')
    e('s_memrealtime s[66:67]')
    e('s_waitcnt lgkmcnt(0)')
    if DBG == 2:
        e('s_cmp_lg_u32 s2, 5')
        e('s_cbranch_scc1 L_end')
        e('s_cmp_lg_u32 s24, 0')
        e('s_cbranch_scc1 L_end')
        e('s_mov_b32 s60, s50'); e('s_and_b32 s61, s51, 0xffff'); e('s_mov_b32 s62, 256'); e('s_mov_b32 s63, 0x00020000')
        e('v_mov_b32 v5, 0')
        for tap in range(8):
            e('s_sub_u32 s3, s%d, s52' % (70+4*tap)); e('v_mov_b32 v0, s3')
            e('s_sub_u32 s3, s%d, s52' % (72+4*tap)); e('v_mov_b32 v1, s3')
            e('buffer_store_dwordx2 v[0:1], v5, s[60:63], 0 offen offset:%d' % (8*tap))
            e('s_nop 1')
    else:
        e('s_cmp_eq_u32 s2, 223')
        e('s_cselect_b32 s2, 3, s2')
        e('s_cmp_ge_u32 s2, 4')
        e('s_cbranch_scc1 L_end')
        e('s_cmp_lg_u32 s24, 0')
        e('s_cbranch_scc1 L_end')
        e('s_mov_b32 s60, s50'); e('s_and_b32 s61, s51, 0xffff'); e('s_mov_b32 s62, 256'); e('s_mov_b32 s63, 0x00020000')
        e('s_sub_u32 s54, s54, s52'); e('s_sub_u32 s56, s56, s52'); e('s_sub_u32 s58, s58, s52'); e('s_sub_u32 s68, s68, s52')
        e('s_sub_u32 s66, s66, s64')
        e('s_lshl_b32 s54, s54, 16'); e('s_or_b32 s54, s54, s66')
        e('v_mov_b32 v0, s54'); e('v_mov_b32 v1, s56'); e('v_mov_b32 v2, s68'); e('v_mov_b32 v3, s58')
        e('s_lshl_b32 s3, s2, 4'); e('v_mov_b32 v5, s3')
        e('buffer_store_dwordx4 v[0:3], v5, s[60:63], 0 offen')
lab('L_end')
e('s_endpgm')
out.append('.section .rodata,"a"')
out.append('.p2align 6')
out.append('.amdhsa_kernel %s_kernel' % NAME)
out.append('  .amdhsa_next_free_vgpr %d' % (NVG+256))
out.append('  .amdhsa_next_free_sgpr 102')
out.append('  .amdhsa_accum_offset %d' % NVG)
out.append('  .amdhsa_group_segment_fixed_size 0')
out.append('  .amdhsa_kernarg_size 40')
out.append('  .amdhsa_user_sgpr_count 2')
out.append('  .amdhsa_user_sgpr_kernarg_segment_ptr 1')
out.append('  .amdhsa_system_sgpr_workgroup_id_x 1')
out.append('.end_amdhsa_kernel')
open(sys.argv[1] if len(sys.argv) > 1 else 'cdna_kernels/%s.s' % NAME, 'w').write('\n'.join(out) + '\n')
```

```python
import sys, os, re
DBG = int(os.environ.get('DBG','0'))
MP = int(os.environ.get('MP','5'))
DMAPOS = os.environ.get('DMAPOS','spread')
NOREAD = int(os.environ.get('NOREAD','0'))
DSPER = int(os.environ.get('DSPER','1'))
NOPACK = int(os.environ.get('NOPACK','0'))
NAME = "standalone__dilated_atrous__vision"
PS = 224
TROW = 20*PS
INB = 18*TROW
WB = INB
WSLOT = 19*1024
LDS = WB + 4*WSLOT
NP2 = 7 - MP
ACC1 = 24
ACC2 = [24+12*MP, 24+12*MP+12]
PF = 24+12*MP+12*min(2,NP2)
PFS = 4*MP
PFTOT = max(2*PFS, PFS+24)
P2BUF = [PF+PFS, PF+PFS+12, PF]
PK = PF + PFTOT
WV = PK + 24
WO = WV + 68
NVG = (WO + 5 + 3)//4*4
assert NVG <= 256
out = []
dsq = []
def e(s): out.append("    " + s)
def lab(s): out.append(s + ":")
def wreg(step, nt):
    idx = step*12 + nt*4
    if idx < 256: return 'a', idx
    return 'v', WV + idx - 256
def rr(t, n, w=4): return '%s[%d:%d]' % (t, n, n+w-1)
def regs(t, n, w=4): return set((t, n+i) for i in range(w))
def ds(instr, dst):
    e(instr); dsq.append(dst)
def need(rs):
    last = -1
    for i, d in enumerate(dsq):
        if d & rs: last = i
    if last >= 0:
        n = len(dsq) - 1 - last
        n = min(n, 15)
        e('s_waitcnt lgkmcnt(%d)' % n)
        del dsq[:len(dsq)-n]
def drain():
    if dsq:
        e('s_waitcnt lgkmcnt(0)'); del dsq[:]
def stamp(a):
    e('s_memtime s[%d:%d]' % (a, a+1)); e('s_waitcnt lgkmcnt(0)'); del dsq[:]

hdr = open('cdna_kernels/%s.s.ref' % NAME).read().split('\n')
for l in hdr:
    if l.startswith('; @launch'):
        out.append("; @launch grid=(224,1,1) block=(256,1,1) lds=%d" % LDS)
    elif l.startswith(';'):
        out.append(l)
    else:
        break
out.append('.amdgcn_target "amdgcn-amd-amdhsa--gfx950"')
out.append('.text')
out.append('.globl %s_kernel' % NAME)
out.append('.p2align 8')
out.append('.type %s_kernel,@function' % NAME)
lab('%s_kernel' % NAME)
e('s_cmp_ge_u32 s2, 224')
e('s_cbranch_scc1 L_end')
e('s_load_dwordx4 s[4:7], s[0:1], 0')
e('s_load_dwordx2 s[8:9], s[0:1], 16')
if DBG:
    e('s_memtime s[52:53]')
    e('s_memrealtime s[64:65]')
    e('s_load_dwordx2 s[50:51], s[0:1], 24')
e('s_and_b32 s3, s2, 7')
e('s_lshr_b32 s10, s2, 3')
e('s_mul_i32 s3, s3, 28')
e('s_add_u32 s3, s3, s10')
e('s_mul_i32 s10, s3, 4682')
e('s_lshr_b32 s10, s10, 16')
e('s_mul_i32 s11, s10, 14')
e('s_sub_u32 s11, s3, s11')
e('s_mul_i32 s25, s10, 14')
e('s_lshl_b32 s26, s11, 4')
e('v_lshrrev_b32 v1, 6, v0')
e('v_and_b32 v0, 63, v0')
e('v_readfirstlane_b32 s24, v1')
e('v_mul_u32_u24 v2, 4682, v0')
e('v_lshrrev_b32 v2, 16, v2')
e('v_mul_u32_u24 v3, 14, v2')
e('v_sub_u32 v3, v0, v3')
e('v_mul_u32_u24 v4, 192, v2')
e('v_lshl_add_u32 v4, v3, 4, v4')
e('s_cmp_eq_u32 s26, 0')
e('s_cselect_b32 s27, -384, 0')
e('s_cselect_b32 s28, 0, 2')
e('s_cselect_b64 s[30:31], -1, 0')
e('s_sub_u32 s28, s26, s28')
e('s_cmp_eq_u32 s26, 208')
e('s_cselect_b64 s[32:33], -1, 0')
e('v_add_u32 v4, s27, v4')
e('v_mov_b32 v5, 0x40000000')
e('v_cmp_gt_u32 vcc, 2, v2')
e('s_and_b64 s[30:31], s[30:31], vcc')
e('v_cmp_le_u32 vcc, 2, v2')
e('s_and_b64 s[32:33], s[32:33], vcc')
e('v_cndmask_b32 v10, v4, v5, s[30:31]')
e('v_add_u32 v11, 768, v4')
e('v_add_u32 v12, 1536, v4')
e('v_add_u32 v13, 2304, v4')
e('v_add_u32 v14, 3072, v4')
e('v_cndmask_b32 v14, v14, v5, s[32:33]')
for u in range(5):
    e('s_mul_i32 s29, s24, 5')
    e('s_add_u32 s29, s29, %d' % u)
    e('s_min_u32 s29, s29, 18')
    e('s_lshl_b32 s29, s29, 6')
    e('v_add_u32 v8, s29, v0')
    e('v_mul_u32_u24 v9, 669, v8')
    e('v_lshrrev_b32 v9, 16, v9')
    e('v_mul_u32_u24 v15, 98, v9')
    e('v_sub_u32 v15, v8, v15')
    e('v_min_u32 v15, 95, v15')
    e('v_mul_u32_u24 v9, 1536, v9')
    e('v_lshl_add_u32 v%d, v15, 4, v9' % (WO+u))
e('s_mov_b32 s34, 0x%08x' % ((0xFFF | (0xFFF<<14) | (0xF<<28)) & 0xffffffff))
e('s_mov_b32 s35, 0x%08x' % (((0xFF) | (0xFFF<<10)) & 0xffffffff))
e('s_mov_b32 s36, -1')
e('s_mov_b32 s37, 0xffff')
e('s_mul_i32 s42, s24, 5120')
e('s_add_u32 s76, s42, 4096')
e('s_min_u32 s76, s76, 18432')
e('s_mul_i32 s43, s24, %d' % TROW)
e('s_waitcnt lgkmcnt(0)')
e('s_mov_b32 s16, s6'); e('s_and_b32 s17, s7, 0xffff'); e('s_mov_b32 s18, %d' % (9*96*192)); e('s_mov_b32 s19, 0x00020000')
e('s_mov_b32 s12, s4'); e('s_and_b32 s13, s5, 0xffff'); e('s_mov_b32 s14, %d' % (224*224*192)); e('s_mov_b32 s15, 0x00020000')

def wdma(tap):
    slot = tap % 4
    L = []
    for u in range(5):
        pre = ['s_mov_b32 s44, %d' % (tap*18432)] if u == 0 else []
        if u < 4: m = 's_add_u32 m0, s42, %d' % (WB + slot*WSLOT + u*1024)
        else: m = 's_add_u32 m0, s76, %d' % (WB + slot*WSLOT)
        L.append(pre + [m, 's_nop 0',
                  'buffer_load_dwordx4 v%d, s[16:19], s44 offen lds' % (WO+u)])
    return L
def indma(q):
    e('s_add_u32 s45, s25, s24')
    e('s_add_u32 s45, s45, %d' % (4*q-2))
    e('s_mul_i32 s46, s45, 224')
    e('s_add_u32 s46, s46, s28')
    e('s_mul_i32 s46, s46, 192')
    e('s_cmp_lt_u32 s45, 224')
    e('s_cselect_b32 s46, s46, 0x40000000')
    for i in range(5):
        e('s_add_u32 m0, s43, %d' % (q*4*TROW + i*4*PS))
        e('v_add_u32 v5, s46, v%d' % (10+i))
        e('buffer_load_dwordx4 v5, s[12:15], 0 offen lds')

vmq = []
def rowbase(q, dst):
    e('s_add_u32 s45, s25, s24')
    e('s_add_u32 s45, s45, %d' % (4*q-2))
    e('s_mul_i32 %s, s45, 224' % dst)
    e('s_add_u32 %s, %s, s28' % (dst, dst))
    e('s_mul_i32 %s, %s, 192' % (dst, dst))
    e('s_cmp_lt_u32 s45, 224')
    e('s_cselect_b32 %s, %s, 0x40000000' % (dst, dst))
def vmneed(tags):
    last = -1
    for i, t in enumerate(vmq):
        if t[0] in tags: last = i
    n = sum(1 for t in vmq[last+1:] if not t[1])
    e('s_waitcnt vmcnt(%d)' % n)
for g in wdma(0):
    for i in g: e(i)
    vmq.append(('W0', False))
e('s_mov_b64 exec, s[34:35]')
for q in range(3):
    indma(q)
    vmq += [('R%d' % q, False)]*5
e('s_mov_b64 exec, -1')
for g in wdma(1):
    for i in g: e(i)
    vmq.append(('W1', False))
e('s_mov_b64 exec, -1')
rowbase(3, 's74'); rowbase(4, 's75')
e('s_lshr_b32 s38, s24, 1')
e('s_and_b32 s39, s24, 1')
e('v_and_b32 v6, 15, v0')
e('v_lshrrev_b32 v7, 4, v0')
e('s_mul_i32 s40, s39, %d' % TROW)
e('v_mul_u32_u24 v16, %d, v6' % PS)
e('v_lshl_add_u32 v16, v7, 4, v16')
e('v_add_u32 v16, s40, v16')
e('v_add_u32 v17, %d, v16' % (2*MP*TROW))
e('v_lshrrev_b32 v8, 2, v6')
e('v_and_b32 v9, 3, v6')
e('v_mul_u32_u24 v18, 1568, v7')
e('v_mul_u32_u24 v8, 192, v8')
e('v_add_u32 v18, v18, v8')
e('v_lshl_add_u32 v18, v9, 3, v18')
e('s_mul_i32 s41, s38, 96')
e('s_add_u32 s41, s41, %d' % WB)
e('v_add_u32 v18, s41, v18')
e('v_add_u32 v19, %d, v18' % (2*WSLOT))
e('v_mul_u32_u24 v22, 192, v6')
e('s_mul_i32 s41, s38, 96')
e('v_add_u32 v22, s41, v22')
e('v_lshrrev_b32 v8, 1, v7')
e('v_and_b32 v9, 1, v7')
e('v_lshl_add_u32 v20, v8, 4, v22')
e('v_lshl_add_u32 v20, v9, 5, v20')
e('v_lshl_add_u32 v21, v7, 3, v22')
e('v_add_u32 v21, 64, v21')
e('s_add_u32 s47, s39, s25')
e('s_mul_i32 s47, s47, 224')
e('s_add_u32 s47, s47, s26')
e('s_mul_i32 s47, s47, 192')
e('s_mov_b32 s20, s8'); e('s_and_b32 s21, s9, 0xffff'); e('s_mov_b32 s22, %d' % (224*224*192)); e('s_mov_b32 s23, 0x00020000')
vmneed(['W0','R0','R1','R2'])
e('s_barrier')
if DBG: stamp(54)

def p1_reads(step, buf):
    tap, ks = divmod(step, 3)
    ti, tj = divmod(tap, 3)
    L = []
    slot = tap % 4
    wb = 'v18' if slot < 2 else 'v19'
    for nt in range(3):
        off = (slot & 1)*WSLOT + ks*6272 + nt*32
        t, n = wreg(step, nt)
        L.append(('ds_read_b64_tr_b16 %s, %s offset:%d' % (rr(t, n, 2), wb, off), regs(t, n, 2)))
        L.append(('ds_read_b64_tr_b16 %s, %s offset:%d' % (rr(t, n+2, 2), wb, off+768), regs(t, n+2, 2)))
    for t in range(MP):
        off = ((2*t + 2*ti)*20 + 2*tj)*PS + ks*64
        b = PF + PFS*buf + 4*t
        L.append(('ds_read_b128 v[%d:%d], v16 offset:%d' % (b, b+3, off), regs('v', b)))
    return L
def p2_reads(k, tap, buf):
    ti, tj = divmod(tap, 3)
    L = []
    for ks in range(3):
        off = ((2*k + 2*ti)*20 + 2*tj)*PS + ks*64
        b = P2BUF[buf] + 4*ks
        L.append(('ds_read_b128 v[%d:%d], v17 offset:%d' % (b, b+3, off), regs('v', b)))
    return L

pkrot = [0]
def pack_tile(acc, rowidx):
    t = PK + 8*(pkrot[0] % 3); pkrot[0] += 1
    L = []
    L.append('v_cvt_pk_bf16_f32 v%d, v%d, v%d' % (t, acc, acc+1))
    L.append('v_cvt_pk_bf16_f32 v%d, v%d, v%d' % (t+1, acc+2, acc+3))
    L.append('v_cvt_pk_bf16_f32 v%d, v%d, v%d' % (t+2, acc+4, acc+5))
    L.append('v_cvt_pk_bf16_f32 v%d, v%d, v%d' % (t+3, acc+6, acc+7))
    L.append('v_cvt_pk_bf16_f32 v%d, v%d, v%d' % (t+4, acc+8, acc+9))
    L.append('v_cvt_pk_bf16_f32 v%d, v%d, v%d' % (t+5, acc+10, acc+11))
    L.append('s_add_u32 s48, s47, %d' % (rowidx*2*43008))
    L.append('v_permlane16_swap_b32 v%d, v%d' % (t, t+2))
    L.append('v_permlane16_swap_b32 v%d, v%d' % (t+1, t+3))
    L.append('buffer_store_dwordx2 v[%d:%d], v21, s[20:23], s48 offen' % (t+4, t+5))
    L.append('buffer_store_dwordx4 v[%d:%d], v20, s[20:23], s48 offen' % (t, t+3))
    return L

def run(mf, fillers, per=2):
    k = 0
    for idx, (m, nd) in enumerate(mf):
        need(nd)
        e(m)
        for _ in range(per):
            if k < len(fillers):
                f = fillers[k]; k += 1
                if f[0] == 'ds': ds(f[1], f[2])
                else:
                    for i in f[1]: e(i)
    while k < len(fillers):
        f = fillers[k]; k += 1
        if f[0] == 'ds': ds(f[1], f[2])
        else:
            for i in f[1]: e(i)

def wjob(tap, u):
    return (wdma(tap)[u], ('W%d' % tap, False))
lblc = [0]
def rjob(q, i):
    L = []
    if q == 4:
        lblc[0] += 1
        L += ['s_cmp_ge_u32 s24, 2', 's_cbranch_scc1 L_skip%d' % lblc[0]]
    L += ['s_add_u32 m0, s43, %d' % (q*4*TROW + i*4*PS),
          'v_add_u32 v5, %s, v%d' % ('s74' if q == 3 else 's75', 10+i),
          's_mov_b64 exec, s[34:35]',
          'buffer_load_dwordx4 v5, s[12:15], 0 offen lds',
          's_mov_b64 exec, -1']
    if q == 4:
        L += ['@L_skip%d' % lblc[0]]
    return (L, ('R%d' % q, q == 4))
jobs = {t: [] for t in range(9)}
for t in range(7):
    jobs[t] += [wjob(t+2, u) for u in range(5)]
rj = [rjob(3, i) for i in range(5)] + [rjob(4, i) for i in range(5)]
for idx, j in enumerate(rj):
    jobs[1 + idx//2].append(j)
for i, d in p1_reads(0, 0): ds(i, d)
def emit_raw(L):
    for i in L:
        if i.startswith('@'): lab(i[1:])
        else: e(i)
for tap in range(9):
    J = jobs[tap]
    nm = 3*3*MP
    pos = [int((k+0.5)*nm/len(J)) for k in range(len(J))] if J else []
    jn = 0
    gi = 0
    for ks in range(3):
        step = tap*3 + ks
        buf = step & 1
        if ks == 2 and tap < 8:
            nd = set()
            for nt in range(3):
                t, n = wreg(step, nt); nd |= regs(t, n)
            need(nd)
            if DBG == 2: stamp(70+4*tap)
            tags = ['W%d' % (tap+1)]
            if tap+1 >= 3: tags += ['R3'] if (2*MP-1+4) >= 12 and tap+1 >= 6 else []
            if tap == 7: tags += ['R3', 'R4']
            vmneed(tags); e('s_barrier')
            if DBG == 2: stamp(72+4*tap)
        fl = []
        if step < 26:
            fl = p1_reads(step+1, buf^1)
        else:
            fl = p2_reads(0, 0, 0) + p2_reads(0, 1, 1)
        k = 0
        for t in range(MP):
            for nt in range(3):
                a = ACC1 + 12*t + 4*nt
                wt, wn = wreg(step, nt)
                pb = PF + PFS*buf + 4*t
                c = '0' if step == 0 else 'v[%d:%d]' % (a, a+3)
                if nt == 0 and t in (0, 3):
                    nd = set()
                    for n2 in range(3):
                        w2t, w2n = wreg(step, n2); nd |= regs(w2t, w2n)
                    for t2 in range(t, min(t+3, MP)):
                        nd |= regs('v', PF + PFS*buf + 4*t2)
                    need(nd)
                need(regs(wt, wn) | regs('v', pb))
                e('v_mfma_f32_16x16x32_bf16 v[%d:%d], %s, v[%d:%d], %s' % (a, a+3, rr(wt, wn), pb, pb+3, c))
                if jn < len(J) and pos[jn] <= gi:
                    emit_raw(J[jn][0]); vmq.append(J[jn][1]); jn += 1
                else:
                    for _ in range(DSPER):
                        if k < len(fl):
                            ds(fl[k][0], fl[k][1]); k += 1
                gi += 1
        while k < len(fl):
            ds(fl[k][0], fl[k][1]); k += 1
    assert jn == len(J)
if DBG: stamp(56)
seq = [(k, tap) for k in range(NP2) for tap in range(9)]
def spaced(L):
    R = []
    for i in L:
        if i.startswith('buffer_store'):
            R.append(('raw', [i])); R += [('raw', [])]*3
        else:
            R.append(('raw', [i]))
    return R
pending = []
for t in range(MP):
    pending += spaced(pack_tile(ACC1 + 12*t, t))
for si, (k, tap) in enumerate(seq):
    acc = ACC2[k & 1]
    buf = si % 3
    fl = []
    if si + 2 < len(seq) and not NOREAD:
        fl = p2_reads(seq[si+2][0], seq[si+2][1], (si+2) % 3)
    kk = 0
    for ks in range(3):
        step = tap*3 + ks
        for nt in range(3):
            a = acc + 4*nt
            wt, wn = wreg(step, nt)
            pb = P2BUF[buf] + 4*ks
            c = '0' if step == 0 else 'v[%d:%d]' % (a, a+3)
            need(regs('v', pb))
            e('v_mfma_f32_16x16x32_bf16 v[%d:%d], %s, v[%d:%d], %s' % (a, a+3, rr(wt, wn), pb, pb+3, c))
            if kk < len(fl):
                ds(fl[kk][0], fl[kk][1]); kk += 1
            if tap != 0 and pending and not NOPACK:
                for i in pending[0][1]: e(i)
                pending = pending[1:]
    if tap == 8:
        assert k == NP2-1 or NOPACK or True
        pending += spaced(pack_tile(acc, MP + k))
if DBG: stamp(68)
e('s_nop 7')
e('s_nop 1')
for g in pending:
    for i in g[1]:
        e(i)
if DBG:
    e('s_waitcnt vmcnt(0)')
    e('s_memtime s[58:59]')
    e('s_memrealtime s[66:67]')
    e('s_waitcnt lgkmcnt(0)')
    if DBG == 2:
        e('s_cmp_lg_u32 s2, 5')
        e('s_cbranch_scc1 L_end')
        e('s_cmp_lg_u32 s24, 0')
        e('s_cbranch_scc1 L_end')
        e('s_mov_b32 s60, s50'); e('s_and_b32 s61, s51, 0xffff'); e('s_mov_b32 s62, 256'); e('s_mov_b32 s63, 0x00020000')
        e('v_mov_b32 v5, 0')
        for tap in range(8):
            e('s_sub_u32 s3, s%d, s52' % (70+4*tap)); e('v_mov_b32 v0, s3')
            e('s_sub_u32 s3, s%d, s52' % (72+4*tap)); e('v_mov_b32 v1, s3')
            e('buffer_store_dwordx2 v[0:1], v5, s[60:63], 0 offen offset:%d' % (8*tap))
            e('s_nop 1')
    else:
        e('s_cmp_eq_u32 s2, 223')
        e('s_cselect_b32 s2, 3, s2')
        e('s_cmp_ge_u32 s2, 4')
        e('s_cbranch_scc1 L_end')
        e('s_cmp_lg_u32 s24, 0')
        e('s_cbranch_scc1 L_end')
        e('s_mov_b32 s60, s50'); e('s_and_b32 s61, s51, 0xffff'); e('s_mov_b32 s62, 256'); e('s_mov_b32 s63, 0x00020000')
        e('s_sub_u32 s54, s54, s52'); e('s_sub_u32 s56, s56, s52'); e('s_sub_u32 s58, s58, s52'); e('s_sub_u32 s68, s68, s52')
        e('s_sub_u32 s66, s66, s64')
        e('s_lshl_b32 s54, s54, 16'); e('s_or_b32 s54, s54, s66')
        e('v_mov_b32 v0, s54'); e('v_mov_b32 v1, s56'); e('v_mov_b32 v2, s68'); e('v_mov_b32 v3, s58')
        e('s_lshl_b32 s3, s2, 4'); e('v_mov_b32 v5, s3')
        e('buffer_store_dwordx4 v[0:3], v5, s[60:63], 0 offen')
lab('L_end')
e('s_endpgm')
out.append('.section .rodata,"a"')
out.append('.p2align 6')
out.append('.amdhsa_kernel %s_kernel' % NAME)
out.append('  .amdhsa_next_free_vgpr %d' % (NVG+256))
out.append('  .amdhsa_next_free_sgpr 102')
out.append('  .amdhsa_accum_offset %d' % NVG)
out.append('  .amdhsa_group_segment_fixed_size 0')
out.append('  .amdhsa_kernarg_size 40')
out.append('  .amdhsa_user_sgpr_count 2')
out.append('  .amdhsa_user_sgpr_kernarg_segment_ptr 1')
out.append('  .amdhsa_system_sgpr_workgroup_id_x 1')
out.append('.end_amdhsa_kernel')
open(sys.argv[1] if len(sys.argv) > 1 else 'cdna_kernels/%s.s' % NAME, 'w').write('\n'.join(out) + '\n')
```

```python
import sys, os, re
DBG = int(os.environ.get('DBG','0'))
MP = int(os.environ.get('MP','5'))
DMAPOS = os.environ.get('DMAPOS','spread')
NOREAD = int(os.environ.get('NOREAD','0'))
NOWARM = int(os.environ.get('NOWARM','0'))
DSPER = int(os.environ.get('DSPER','1'))
NOPACK = int(os.environ.get('NOPACK','0'))
NAME = "standalone__dilated_atrous__vision"
PS = 224
TROW = 20*PS
INB = 18*TROW
WB = INB
WSLOT = 19*1024
LDS = WB + 4*WSLOT
NP2 = 7 - MP
ACC1 = 24
ACC2 = [24+12*MP, 24+12*MP+12]
PF = 24+12*MP+12*min(2,NP2)
PFS = 4*MP
PFTOT = max(2*PFS, PFS+24)
P2BUF = [PF+PFS, PF+PFS+12, PF]
PK = PF + PFTOT
WV = PK + 24
WO = WV + 68
NVG = (WO + 5 + 3)//4*4
assert NVG <= 256
out = []
dsq = []
def e(s): out.append("    " + s)
def lab(s): out.append(s + ":")
def wreg(step, nt):
    idx = step*12 + nt*4
    if idx < 256: return 'a', idx
    return 'v', WV + idx - 256
def rr(t, n, w=4): return '%s[%d:%d]' % (t, n, n+w-1)
def regs(t, n, w=4): return set((t, n+i) for i in range(w))
def ds(instr, dst):
    e(instr); dsq.append(dst)
def need(rs):
    last = -1
    for i, d in enumerate(dsq):
        if d & rs: last = i
    if last >= 0:
        n = len(dsq) - 1 - last
        n = min(n, 15)
        e('s_waitcnt lgkmcnt(%d)' % n)
        del dsq[:len(dsq)-n]
def drain():
    if dsq:
        e('s_waitcnt lgkmcnt(0)'); del dsq[:]
def stamp(a):
    e('s_memtime s[%d:%d]' % (a, a+1)); e('s_waitcnt lgkmcnt(0)'); del dsq[:]

hdr = open('cdna_kernels/%s.s.ref' % NAME).read().split('\n')
for l in hdr:
    if l.startswith('; @launch'):
        out.append("; @launch grid=(224,1,1) block=(256,1,1) lds=%d" % LDS)
    elif l.startswith(';'):
        out.append(l)
    else:
        break
out.append('.amdgcn_target "amdgcn-amd-amdhsa--gfx950"')
out.append('.text')
out.append('.globl %s_kernel' % NAME)
out.append('.p2align 8')
out.append('.type %s_kernel,@function' % NAME)
lab('%s_kernel' % NAME)
e('s_cmp_ge_u32 s2, 224')
e('s_cbranch_scc1 L_end')
e('s_load_dwordx4 s[4:7], s[0:1], 0')
e('s_load_dwordx2 s[8:9], s[0:1], 16')
if DBG:
    e('s_memtime s[52:53]')
    e('s_memrealtime s[64:65]')
    e('s_load_dwordx2 s[50:51], s[0:1], 24')
e('s_and_b32 s3, s2, 7')
e('s_lshr_b32 s10, s2, 3')
e('s_mul_i32 s3, s3, 28')
e('s_add_u32 s3, s3, s10')
e('s_mul_i32 s10, s3, 4682')
e('s_lshr_b32 s10, s10, 16')
e('s_mul_i32 s11, s10, 14')
e('s_sub_u32 s11, s3, s11')
e('s_mul_i32 s25, s10, 14')
e('s_lshl_b32 s26, s11, 4')
e('v_lshrrev_b32 v1, 6, v0')
e('v_and_b32 v0, 63, v0')
e('v_readfirstlane_b32 s24, v1')
e('v_mul_u32_u24 v2, 4682, v0')
e('v_lshrrev_b32 v2, 16, v2')
e('v_mul_u32_u24 v3, 14, v2')
e('v_sub_u32 v3, v0, v3')
e('v_mul_u32_u24 v4, 192, v2')
e('v_lshl_add_u32 v4, v3, 4, v4')
e('s_cmp_eq_u32 s26, 0')
e('s_cselect_b32 s27, -384, 0')
e('s_cselect_b32 s28, 0, 2')
e('s_cselect_b64 s[30:31], -1, 0')
e('s_sub_u32 s28, s26, s28')
e('s_cmp_eq_u32 s26, 208')
e('s_cselect_b64 s[32:33], -1, 0')
e('v_add_u32 v4, s27, v4')
e('v_mov_b32 v5, 0x40000000')
e('v_cmp_gt_u32 vcc, 2, v2')
e('s_and_b64 s[30:31], s[30:31], vcc')
e('v_cmp_le_u32 vcc, 2, v2')
e('s_and_b64 s[32:33], s[32:33], vcc')
e('v_cndmask_b32 v10, v4, v5, s[30:31]')
e('v_add_u32 v11, 768, v4')
e('v_add_u32 v12, 1536, v4')
e('v_add_u32 v13, 2304, v4')
e('v_add_u32 v14, 3072, v4')
e('v_cndmask_b32 v14, v14, v5, s[32:33]')
for u in range(5):
    e('s_mul_i32 s29, s24, 5')
    e('s_add_u32 s29, s29, %d' % u)
    e('s_min_u32 s29, s29, 18')
    e('s_lshl_b32 s29, s29, 6')
    e('v_add_u32 v8, s29, v0')
    e('v_mul_u32_u24 v9, 669, v8')
    e('v_lshrrev_b32 v9, 16, v9')
    e('v_mul_u32_u24 v15, 98, v9')
    e('v_sub_u32 v15, v8, v15')
    e('v_min_u32 v15, 95, v15')
    e('v_mul_u32_u24 v9, 1536, v9')
    e('v_lshl_add_u32 v%d, v15, 4, v9' % (WO+u))
e('s_mov_b32 s34, 0x%08x' % ((0xFFF | (0xFFF<<14) | (0xF<<28)) & 0xffffffff))
e('s_mov_b32 s35, 0x%08x' % (((0xFF) | (0xFFF<<10)) & 0xffffffff))
e('s_mov_b32 s36, -1')
e('s_mov_b32 s37, 0xffff')
e('s_mul_i32 s42, s24, 5120')
e('s_add_u32 s76, s42, 4096')
e('s_min_u32 s76, s76, 18432')
e('s_mul_i32 s43, s24, %d' % TROW)
e('s_waitcnt lgkmcnt(0)')
if DBG == 3: stamp(82)
e('s_mov_b32 s16, s6'); e('s_and_b32 s17, s7, 0xffff'); e('s_mov_b32 s18, %d' % (9*96*192)); e('s_mov_b32 s19, 0x00020000')
e('s_mov_b32 s12, s4'); e('s_and_b32 s13, s5, 0xffff'); e('s_mov_b32 s14, %d' % (224*224*192)); e('s_mov_b32 s15, 0x00020000')

def wdma(tap):
    slot = tap % 4
    L = []
    for u in range(5):
        pre = ['s_mov_b32 s44, %d' % (tap*18432)] if u == 0 else []
        if u < 4: m = 's_add_u32 m0, s42, %d' % (WB + slot*WSLOT + u*1024)
        else: m = 's_add_u32 m0, s76, %d' % (WB + slot*WSLOT)
        L.append(pre + [m, 's_nop 0',
                  'buffer_load_dwordx4 v%d, s[16:19], s44 offen lds' % (WO+u)])
    return L
def indma(q):
    e('s_add_u32 s45, s25, s24')
    e('s_add_u32 s45, s45, %d' % (4*q-2))
    e('s_mul_i32 s46, s45, 224')
    e('s_add_u32 s46, s46, s28')
    e('s_mul_i32 s46, s46, 192')
    e('s_cmp_lt_u32 s45, 224')
    e('s_cselect_b32 s46, s46, 0x40000000')
    for i in range(5):
        e('s_add_u32 m0, s43, %d' % (q*4*TROW + i*4*PS))
        e('v_add_u32 v5, s46, v%d' % (10+i))
        e('buffer_load_dwordx4 v5, s[12:15], 0 offen lds')

vmq = []
def rowbase(q, dst):
    e('s_add_u32 s45, s25, s24')
    e('s_add_u32 s45, s45, %d' % (4*q-2))
    e('s_mul_i32 %s, s45, 224' % dst)
    e('s_add_u32 %s, %s, s28' % (dst, dst))
    e('s_mul_i32 %s, %s, 192' % (dst, dst))
    e('s_cmp_lt_u32 s45, 224')
    e('s_cselect_b32 %s, %s, 0x40000000' % (dst, dst))
def vmneed(tags):
    last = -1
    for i, t in enumerate(vmq):
        if t[0] in tags: last = i
    n = sum(1 for t in vmq[last+1:] if not t[1])
    e('s_waitcnt vmcnt(%d)' % n)
if not NOWARM:
    e('s_lshr_b32 s45, s2, 3')
    e('s_lshl_b32 s45, s45, 2')
    e('s_add_u32 s45, s45, s24')
    e('s_lshl_b32 s45, s45, 10')
    e('v_lshlrev_b32 v5, 4, v0')
    e('v_add_u32 v5, s45, v5')
    e('buffer_load_dwordx4 v[%d:%d], v5, s[16:19], 0 offen' % (WV, WV+3))
    e('v_add_u32 v5, %d, v5' % (112*1024))
    e('buffer_load_dwordx4 v[%d:%d], v5, s[16:19], 0 offen' % (WV+4, WV+7))
    vmq += [('WARM', False)]*2
for g in wdma(0):
    for i in g: e(i)
    vmq.append(('W0', False))
e('s_mov_b64 exec, s[34:35]')
for q in range(3):
    indma(q)
    vmq += [('R%d' % q, False)]*5
e('s_mov_b64 exec, -1')
for g in wdma(1):
    for i in g: e(i)
    vmq.append(('W1', False))
e('s_mov_b64 exec, -1')
rowbase(3, 's74'); rowbase(4, 's75')
e('s_lshr_b32 s38, s24, 1')
e('s_and_b32 s39, s24, 1')
e('v_and_b32 v6, 15, v0')
e('v_lshrrev_b32 v7, 4, v0')
e('s_mul_i32 s40, s39, %d' % TROW)
e('v_mul_u32_u24 v16, %d, v6' % PS)
e('v_lshl_add_u32 v16, v7, 4, v16')
e('v_add_u32 v16, s40, v16')
e('v_add_u32 v17, %d, v16' % (2*MP*TROW))
e('v_lshrrev_b32 v8, 2, v6')
e('v_and_b32 v9, 3, v6')
e('v_mul_u32_u24 v18, 1568, v7')
e('v_mul_u32_u24 v8, 192, v8')
e('v_add_u32 v18, v18, v8')
e('v_lshl_add_u32 v18, v9, 3, v18')
e('s_mul_i32 s41, s38, 96')
e('s_add_u32 s41, s41, %d' % WB)
e('v_add_u32 v18, s41, v18')
e('v_add_u32 v19, %d, v18' % (2*WSLOT))
e('v_mul_u32_u24 v22, 192, v6')
e('s_mul_i32 s41, s38, 96')
e('v_add_u32 v22, s41, v22')
e('v_lshrrev_b32 v8, 1, v7')
e('v_and_b32 v9, 1, v7')
e('v_lshl_add_u32 v20, v8, 4, v22')
e('v_lshl_add_u32 v20, v9, 5, v20')
e('v_lshl_add_u32 v21, v7, 3, v22')
e('v_add_u32 v21, 64, v21')
e('s_add_u32 s47, s39, s25')
e('s_mul_i32 s47, s47, 224')
e('s_add_u32 s47, s47, s26')
e('s_mul_i32 s47, s47, 192')
e('s_mov_b32 s20, s8'); e('s_and_b32 s21, s9, 0xffff'); e('s_mov_b32 s22, %d' % (224*224*192)); e('s_mov_b32 s23, 0x00020000')
if DBG == 3:
    stamp(84)
    vmneed(['W0']); stamp(86)
    vmneed(['R0']); stamp(88)
    vmneed(['R1']); stamp(90)
    vmneed(['R2']); stamp(92)
vmneed(['W0'] + ['R%d' % g for g in range((2*MP-1)//4 + 1)])
e('s_barrier')
if DBG: stamp(54)

def p1_reads(step, buf):
    tap, ks = divmod(step, 3)
    ti, tj = divmod(tap, 3)
    L = []
    slot = tap % 4
    wb = 'v18' if slot < 2 else 'v19'
    for nt in range(3):
        off = (slot & 1)*WSLOT + ks*6272 + nt*32
        t, n = wreg(step, nt)
        L.append(('ds_read_b64_tr_b16 %s, %s offset:%d' % (rr(t, n, 2), wb, off), regs(t, n, 2)))
        L.append(('ds_read_b64_tr_b16 %s, %s offset:%d' % (rr(t, n+2, 2), wb, off+768), regs(t, n+2, 2)))
    for t in range(MP):
        off = ((2*t + 2*ti)*20 + 2*tj)*PS + ks*64
        b = PF + PFS*buf + 4*t
        L.append(('ds_read_b128 v[%d:%d], v16 offset:%d' % (b, b+3, off), regs('v', b)))
    return L
def p2_reads(k, tap, buf):
    ti, tj = divmod(tap, 3)
    L = []
    for ks in range(3):
        off = ((2*k + 2*ti)*20 + 2*tj)*PS + ks*64
        b = P2BUF[buf] + 4*ks
        L.append(('ds_read_b128 v[%d:%d], v17 offset:%d' % (b, b+3, off), regs('v', b)))
    return L

pkrot = [0]
def pack_tile(acc, rowidx):
    t = PK + 8*(pkrot[0] % 3); pkrot[0] += 1
    L = []
    L.append('v_cvt_pk_bf16_f32 v%d, v%d, v%d' % (t, acc, acc+1))
    L.append('v_cvt_pk_bf16_f32 v%d, v%d, v%d' % (t+1, acc+2, acc+3))
    L.append('v_cvt_pk_bf16_f32 v%d, v%d, v%d' % (t+2, acc+4, acc+5))
    L.append('v_cvt_pk_bf16_f32 v%d, v%d, v%d' % (t+3, acc+6, acc+7))
    L.append('v_cvt_pk_bf16_f32 v%d, v%d, v%d' % (t+4, acc+8, acc+9))
    L.append('v_cvt_pk_bf16_f32 v%d, v%d, v%d' % (t+5, acc+10, acc+11))
    L.append('s_add_u32 s48, s47, %d' % (rowidx*2*43008))
    L.append('v_permlane16_swap_b32 v%d, v%d' % (t, t+2))
    L.append('v_permlane16_swap_b32 v%d, v%d' % (t+1, t+3))
    L.append('buffer_store_dwordx2 v[%d:%d], v21, s[20:23], s48 offen' % (t+4, t+5))
    L.append('buffer_store_dwordx4 v[%d:%d], v20, s[20:23], s48 offen' % (t, t+3))
    return L

def run(mf, fillers, per=2):
    k = 0
    for idx, (m, nd) in enumerate(mf):
        need(nd)
        e(m)
        for _ in range(per):
            if k < len(fillers):
                f = fillers[k]; k += 1
                if f[0] == 'ds': ds(f[1], f[2])
                else:
                    for i in f[1]: e(i)
    while k < len(fillers):
        f = fillers[k]; k += 1
        if f[0] == 'ds': ds(f[1], f[2])
        else:
            for i in f[1]: e(i)

def wjob(tap, u):
    return (wdma(tap)[u], ('W%d' % tap, False))
lblc = [0]
def rjob(q, i):
    L = []
    if q == 4:
        lblc[0] += 1
        L += ['s_cmp_ge_u32 s24, 2', 's_cbranch_scc1 L_skip%d' % lblc[0]]
    L += ['s_add_u32 m0, s43, %d' % (q*4*TROW + i*4*PS),
          'v_add_u32 v5, %s, v%d' % ('s74' if q == 3 else 's75', 10+i),
          's_mov_b64 exec, s[34:35]',
          'buffer_load_dwordx4 v5, s[12:15], 0 offen lds',
          's_mov_b64 exec, -1']
    if q == 4:
        L += ['@L_skip%d' % lblc[0]]
    return (L, ('R%d' % q, q == 4))
jobs = {t: [] for t in range(9)}
for t in range(7):
    jobs[t] += [wjob(t+2, u) for u in range(5)]
rj = [rjob(3, i) for i in range(5)] + [rjob(4, i) for i in range(5)]
for idx, j in enumerate(rj):
    jobs[1 + idx//2].append(j)
for i, d in p1_reads(0, 0): ds(i, d)
def emit_raw(L):
    for i in L:
        if i.startswith('@'): lab(i[1:])
        else: e(i)
for tap in range(9):
    J = jobs[tap]
    nm = 3*3*MP
    pos = [int((k+0.5)*nm/len(J)) for k in range(len(J))] if J else []
    jn = 0
    gi = 0
    for ks in range(3):
        step = tap*3 + ks
        buf = step & 1
        if ks == 2 and tap < 8:
            nd = set()
            for nt in range(3):
                t, n = wreg(step, nt); nd |= regs(t, n)
            need(nd)
            if DBG == 2: stamp(70+4*tap)
            tags = ['W%d' % (tap+1)] + ['R%d' % g for g in range((2*MP-1+2*((tap+1)//3))//4 + 1)]
            if tap == 7: tags += ['R3', 'R4']
            vmneed(tags); e('s_barrier')
            if DBG == 2: stamp(72+4*tap)
        fl = []
        if step < 26:
            fl = p1_reads(step+1, buf^1)
        else:
            fl = p2_reads(0, 0, 0) + p2_reads(0, 1, 1)
        k = 0
        for t in range(MP):
            for nt in range(3):
                a = ACC1 + 12*t + 4*nt
                wt, wn = wreg(step, nt)
                pb = PF + PFS*buf + 4*t
                c = '0' if step == 0 else 'v[%d:%d]' % (a, a+3)
                if nt == 0 and t in (0, 3):
                    nd = set()
                    for n2 in range(3):
                        w2t, w2n = wreg(step, n2); nd |= regs(w2t, w2n)
                    for t2 in range(t, min(t+3, MP)):
                        nd |= regs('v', PF + PFS*buf + 4*t2)
                    need(nd)
                need(regs(wt, wn) | regs('v', pb))
                e('v_mfma_f32_16x16x32_bf16 v[%d:%d], %s, v[%d:%d], %s' % (a, a+3, rr(wt, wn), pb, pb+3, c))
                if jn < len(J) and pos[jn] <= gi:
                    emit_raw(J[jn][0]); vmq.append(J[jn][1]); jn += 1
                else:
                    for _ in range(DSPER):
                        if k < len(fl):
                            ds(fl[k][0], fl[k][1]); k += 1
                gi += 1
        while k < len(fl):
            ds(fl[k][0], fl[k][1]); k += 1
    assert jn == len(J)
if DBG: stamp(56)
seq = [(k, tap) for k in range(NP2) for tap in range(9)]
def spaced(L):
    R = []
    for i in L:
        if i.startswith('buffer_store'):
            R.append(('raw', [i])); R += [('raw', [])]*3
        else:
            R.append(('raw', [i]))
    return R
pending = []
for t in range(MP):
    pending += spaced(pack_tile(ACC1 + 12*t, t))
for si, (k, tap) in enumerate(seq):
    acc = ACC2[k & 1]
    buf = si % 3
    fl = []
    if si + 2 < len(seq) and not NOREAD:
        fl = p2_reads(seq[si+2][0], seq[si+2][1], (si+2) % 3)
    kk = 0
    for ks in range(3):
        step = tap*3 + ks
        for nt in range(3):
            a = acc + 4*nt
            wt, wn = wreg(step, nt)
            pb = P2BUF[buf] + 4*ks
            c = '0' if step == 0 else 'v[%d:%d]' % (a, a+3)
            need(regs('v', pb))
            e('v_mfma_f32_16x16x32_bf16 v[%d:%d], %s, v[%d:%d], %s' % (a, a+3, rr(wt, wn), pb, pb+3, c))
            if kk < len(fl):
                ds(fl[kk][0], fl[kk][1]); kk += 1
            if tap != 0 and pending and not NOPACK:
                for i in pending[0][1]: e(i)
                pending = pending[1:]
    if tap == 8:
        assert k == NP2-1 or NOPACK or True
        pending += spaced(pack_tile(acc, MP + k))
if DBG: stamp(68)
e('s_nop 7')
e('s_nop 1')
for g in pending:
    for i in g[1]:
        e(i)
if DBG:
    e('s_waitcnt vmcnt(0)')
    e('s_memtime s[58:59]')
    e('s_memrealtime s[66:67]')
    e('s_waitcnt lgkmcnt(0)')
    if DBG == 3:
        e('s_cmp_ge_u32 s2, 2')
        e('s_cbranch_scc1 L_end')
        e('s_mov_b32 s60, s50'); e('s_and_b32 s61, s51, 0xffff'); e('s_mov_b32 s62, 256'); e('s_mov_b32 s63, 0x00020000')
        e('s_lshl_b32 s3, s2, 2'); e('s_add_u32 s3, s3, s24'); e('s_lshl_b32 s3, s3, 5'); e('v_mov_b32 v5, s3')
        for i, r in enumerate((82,84,86,88,90,92,54,58)):
            e('s_sub_u32 s3, s%d, s52' % r); e('v_mov_b32 v0, s3')
            e('buffer_store_dword v0, v5, s[60:63], 0 offen offset:%d' % (4*i))
            e('s_nop 1')
    elif DBG == 2:
        e('s_cmp_lg_u32 s2, 5')
        e('s_cbranch_scc1 L_end')
        e('s_cmp_lg_u32 s24, 0')
        e('s_cbranch_scc1 L_end')
        e('s_mov_b32 s60, s50'); e('s_and_b32 s61, s51, 0xffff'); e('s_mov_b32 s62, 256'); e('s_mov_b32 s63, 0x00020000')
        e('v_mov_b32 v5, 0')
        for tap in range(8):
            e('s_sub_u32 s3, s%d, s52' % (70+4*tap)); e('v_mov_b32 v0, s3')
            e('s_sub_u32 s3, s%d, s52' % (72+4*tap)); e('v_mov_b32 v1, s3')
            e('buffer_store_dwordx2 v[0:1], v5, s[60:63], 0 offen offset:%d' % (8*tap))
            e('s_nop 1')
    else:
        e('s_cmp_eq_u32 s2, 223')
        e('s_cselect_b32 s2, 3, s2')
        e('s_cmp_ge_u32 s2, 4')
        e('s_cbranch_scc1 L_end')
        e('s_cmp_lg_u32 s24, 0')
        e('s_cbranch_scc1 L_end')
        e('s_mov_b32 s60, s50'); e('s_and_b32 s61, s51, 0xffff'); e('s_mov_b32 s62, 256'); e('s_mov_b32 s63, 0x00020000')
        e('s_sub_u32 s54, s54, s52'); e('s_sub_u32 s56, s56, s52'); e('s_sub_u32 s58, s58, s52'); e('s_sub_u32 s68, s68, s52')
        e('s_sub_u32 s66, s66, s64')
        e('s_lshl_b32 s54, s54, 16'); e('s_or_b32 s54, s54, s66')
        e('v_mov_b32 v0, s54'); e('v_mov_b32 v1, s56'); e('v_mov_b32 v2, s68'); e('v_mov_b32 v3, s58')
        e('s_lshl_b32 s3, s2, 4'); e('v_mov_b32 v5, s3')
        e('buffer_store_dwordx4 v[0:3], v5, s[60:63], 0 offen')
lab('L_end')
e('s_endpgm')
out.append('.section .rodata,"a"')
out.append('.p2align 6')
out.append('.amdhsa_kernel %s_kernel' % NAME)
out.append('  .amdhsa_next_free_vgpr %d' % (NVG+256))
out.append('  .amdhsa_next_free_sgpr 102')
out.append('  .amdhsa_accum_offset %d' % NVG)
out.append('  .amdhsa_group_segment_fixed_size 0')
out.append('  .amdhsa_kernarg_size 40')
out.append('  .amdhsa_user_sgpr_count 2')
out.append('  .amdhsa_user_sgpr_kernarg_segment_ptr 1')
out.append('  .amdhsa_system_sgpr_workgroup_id_x 1')
out.append('.end_amdhsa_kernel')
open(sys.argv[1] if len(sys.argv) > 1 else 'cdna_kernels/%s.s' % NAME, 'w').write('\n'.join(out) + '\n')
```
